```python
import torch

def _softmax(x, axis=-1):
    return torch.softmax(x, dim=axis)

def _gelu(x):
    return torch.nn.functional.gelu(x, approximate='tanh')

def _silu(x):
    return torch.nn.functional.silu(x)

def _sigmoid(x):
    return torch.sigmoid(x)

def _layernorm(x, axis=-1, eps=1e-05):
    m = x.mean(dim=axis, keepdim=True)
    v = x.var(dim=axis, keepdim=True, unbiased=False)
    return (x - m) / torch.sqrt(v + eps)

def _scatter_add(tgt, idx, src, axis=0):
    return tgt.clone().index_add_(axis, idx, src)

def _segment_sum(src, seg, n):
    out = torch.zeros((n,) + src.shape[1:], dtype=src.dtype)
    return out.index_add_(0, seg, src)

def _pad(x, pw):
    flat = tuple((v for pair in reversed(pw) for v in pair))
    return torch.nn.functional.pad(x, flat)
kernel_name = 'parallel_sum__memory_aug_recurrent_mem_tr__dense_activation_mish__prompt'

def setup_inputs():

    _w = lambda a: (lambda t: t.to(torch.bfloat16) if t.is_floating_point() else t)(torch.as_tensor(a))

    def _A_setup():
        B, S, Dm = (1, 2048, 512)
        H, Dh = (32, 128)
        M, seg = (8, 32)
        seg = min(seg, S)
        S = S // seg * seg
        return {'x': _w((lambda *s: torch.randn(*s, dtype=torch.bfloat16) * 0.05)(B, S, Dm)), 'mem0': _w((lambda *s: torch.randn(*s, dtype=torch.bfloat16) * 0.2)(B, M, Dm)), 'Wq': _w((lambda *s: torch.randn(*s, dtype=torch.bfloat16) * 1.6)(Dm, H, Dh) * Dm ** (-0.5)), 'Wk': _w((lambda *s: torch.randn(*s, dtype=torch.bfloat16) * 1.6)(Dm, H, Dh) * Dm ** (-0.5)), 'Wv': _w((lambda *s: torch.randn(*s, dtype=torch.bfloat16) * 0.2)(Dm, H, Dh) * Dm ** (-0.5)), 'Wo': _w((lambda *s: torch.randn(*s, dtype=torch.bfloat16) * 0.2)(H, Dh, Dm) * (H * Dh) ** (-0.5)), 'seg_len': seg}
    _A_in = _A_setup()

    def _B_setup():
        B, S, D, F = (1, 2048, 512, 1792)
        return {'x': _w((lambda *s: torch.randn(*s, dtype=torch.bfloat16) * 0.05)(B, S, D)), 'w1': _w((lambda *s: torch.randn(*s, dtype=torch.bfloat16) * 0.8)(D, F) * D ** (-0.5)), 'b1': _w((lambda *s: torch.randn(*s, dtype=torch.bfloat16) * 0.2)(F)), 'w2': _w((lambda *s: torch.randn(*s, dtype=torch.bfloat16) * 0.1)(F, D) * F ** (-0.5))}
    _B_in = _B_setup()
    return {'A_x': _A_in['x'], 'A_mem0': _A_in['mem0'], 'A_Wq': _A_in['Wq'], 'A_Wk': _A_in['Wk'], 'A_Wv': _A_in['Wv'], 'A_Wo': _A_in['Wo'], 'A_seg_len': _A_in['seg_len'], 'B_x': _B_in['x'], 'B_w1': _B_in['w1'], 'B_b1': _B_in['b1'], 'B_w2': _B_in['w2']}

def reference(A_x, A_mem0, A_Wq, A_Wk, A_Wv, A_Wo, A_seg_len, B_x, B_w1, B_b1, B_w2):

    def _A_ref(x, mem0, Wq, Wk, Wv, Wo, seg_len):
        B, S, Dm = x.shape
        H, Dh = (Wq.shape[1], Wq.shape[2])
        M = mem0.shape[1]
        scale = Dh ** (-0.5)
        n_seg = S // seg_len
        L = M + seg_len
        idx = torch.arange(L)
        mask = (idx[:, None] < M) | (idx[:, None] >= idx[None, :])
        mem = mem0
        outs = []
        for s in range(n_seg):
            xs = x[:, s * seg_len:(s + 1) * seg_len, :].clone()
            h = torch.concatenate([mem, xs], axis=1)
            q = torch.einsum('btd,dhe->bhte', h, Wq)
            k = torch.einsum('btd,dhe->bhte', h, Wk)
            v = torch.einsum('btd,dhe->bhte', h, Wv)
            scores = torch.einsum('bhqe,bhke->bhqk', q, k) * scale
            scores = torch.where(mask[None, None], scores, -1000000000.0)
            p = _softmax(scores, axis=-1)
            o = torch.einsum('bhqk,bhke->bhqe', p, v)
            o = torch.einsum('bhte,hed->btd', o, Wo)
            mem = o[:, :M, :].clone()
            outs.append(o[:, M:, :])
        return torch.concatenate(outs, axis=1)

    def _B_ref(x, w1, b1, w2):
        h = torch.einsum('bsd,df->bsf', x, w1) + b1
        sp = torch.log1p(torch.exp(-torch.abs(h))) + torch.where(h > 0, h, torch.zeros_like(h))
        act = h * torch.tanh(sp)
        return torch.einsum('bsf,fd->bsd', act, w2)
    x = A_x
    xn = _layernorm(x, axis=-1)
    return x + _A_ref(xn, A_mem0, A_Wq, A_Wk, A_Wv, A_Wo, A_seg_len) + _B_ref(xn, B_w1, B_b1, B_w2)
```

```python
import re

REG_RE = re.compile(r'^(-|abs\()?([vas])(?:\[(\d+):(\d+)\]|(\d+))\)?$')

def parse_reg(tok):
    tok = tok.strip()
    if tok == 'vcc': return [('s', 'vcc')]
    if tok in ('vcc_lo', 'vcc_hi'): return [('s', 'vcc')]
    if tok == 'exec': return [('s', 'exec')]
    if tok in ('exec_lo', 'exec_hi'): return [('s', 'exec')]
    if tok == 'm0': return [('s', 'm0')]
    m = REG_RE.match(tok)
    if not m: return []
    c = m.group(2)
    if m.group(3) is not None:
        return [(c, i) for i in range(int(m.group(3)), int(m.group(4)) + 1)]
    return [(c, int(m.group(5)))]

def split_ops(s):
    out, depth, cur = [], 0, ''
    for ch in s:
        if ch in '[(': depth += 1
        if ch in '])': depth -= 1
        if ch == ',' and depth == 0:
            out.append(cur.strip()); cur = ''
        else: cur += ch
    if cur.strip(): out.append(cur.strip())
    return out

TRANS = ('v_exp_f32', 'v_log_f32', 'v_rcp_f32', 'v_rsq_f32', 'v_sqrt_f32', 'v_sin_f32', 'v_cos_f32', 'v_rcp_iflag_f32')

class Ins:
    __slots__ = ('text', 'op', 'ops', 'mods', 'defs', 'uses', 'kind', 'passes', 'cuse', 'abuse', 'dpp', 'addr_s')
    def __init__(s, text):
        s.text = text
        t = text.split(';')[0].strip()
        parts = t.split(None, 1)
        s.op = parts[0]
        rest = parts[1] if len(parts) > 1 else ''
        ops = split_ops(rest)
        mods = ''
        if ops:
            last = ops[-1].split()
            if len(last) > 1:
                ops[-1] = last[0]; mods = ' '.join(last[1:])
        s.ops, s.mods = ops, mods
        s.defs, s.uses = [], []
        s.cuse, s.abuse = [], []
        s.passes = 0; s.dpp = False; s.addr_s = []
        op = s.op
        R = lambda i: parse_reg(ops[i]) if i < len(ops) else []
        allfrom = lambda i: [r for k in range(i, len(ops)) for r in parse_reg(ops[k])]
        if op.startswith('v_mfma') or op.startswith('v_smfmac'):
            s.kind = 'mfma'
            s.passes = 8 if '32x32' in op else 4
            s.defs = R(0)
            s.abuse = R(1) + R(2)
            if op.startswith('v_smfmac'):
                s.cuse = R(0); s.abuse += R(3)
            else:
                s.cuse = R(3)
            s.uses = s.abuse + s.cuse
        elif op.startswith('v_'):
            s.kind = 'valu'
            s.dpp = ('_dpp' in op) or ('row_' in mods) or ('quad_perm' in mods)
            if op.startswith('v_cmp'):
                s.defs = R(0); s.uses = allfrom(1)
            elif op.startswith('v_readlane') or op.startswith('v_readfirstlane'):
                s.defs = R(0); s.uses = allfrom(1)
            elif 'permlane' in op and 'swap' in op:
                s.defs = R(0) + R(1); s.uses = R(0) + R(1)
            elif op.startswith('v_add_co') or op.startswith('v_sub_co') or op.startswith('v_addc_co'):
                s.defs = R(0) + R(1); s.uses = allfrom(2)
            elif op.startswith('v_fmac') or op.startswith('v_dot2c') or op.startswith('v_writelane') or op.startswith('v_pk_fmac'):
                s.defs = R(0); s.uses = R(0) + allfrom(1)
            else:
                s.defs = R(0); s.uses = allfrom(1)
                if op.startswith('v_cndmask') and len(ops) == 3: s.uses.append(('s', 'vcc'))
                if s.dpp and ('bound_ctrl' not in mods): s.uses += R(0)
        elif op.startswith('ds_'):
            s.kind = 'ds'
            if op.startswith('ds_read') or op.startswith('ds_bpermute') or op.startswith('ds_swizzle') or op.startswith('ds_permute'):
                s.defs = R(0); s.uses = allfrom(1)
            else:
                s.uses = allfrom(0)
        elif op.startswith('buffer_') or op.startswith('global_'):
            s.kind = 'vm'
            lds = ' lds' in (' ' + mods)
            if op in ('buffer_wbl2', 'buffer_inv'):
                pass
            elif 'load' in op:
                if lds:
                    s.uses = allfrom(0) + [('s', 'm0')]
                else:
                    s.defs = R(0); s.uses = allfrom(1)
            elif 'atomic' in op:
                s.uses = allfrom(0)
                if 'sc0' in mods: s.defs = R(0)
            else:
                s.uses = allfrom(0)
            s.addr_s = [r for r in s.uses if r[0] == 's']
        elif op.startswith('s_'):
            if op.startswith('s_load') or op.startswith('s_buffer_load') or op in ('s_memtime', 's_memrealtime'):
                s.kind = 'smem'; s.defs = R(0); s.uses = allfrom(1)
            elif op.startswith('s_cbranch') or op == 's_branch':
                s.kind = 'branch'
                if 'vcc' in op: s.uses = [('s', 'vcc')]
                if 'exec' in op: s.uses = [('s', 'exec')]
            elif op in ('s_waitcnt', 's_nop', 's_barrier', 's_endpgm', 's_sleep', 's_setprio'):
                s.kind = 'ctl'
            elif op.startswith('s_cmp') or op.startswith('s_bitcmp'):
                s.kind = 'salu'; s.uses = allfrom(0)
            else:
                s.kind = 'salu'; s.defs = R(0); s.uses = allfrom(1)
                if 'saveexec' in op: s.defs += [('s', 'exec')]; s.uses += [('s', 'exec')]
                if op in ('s_bitset1_b32', 's_bitset0_b32', 's_addk_i32', 's_mulk_i32'): s.uses += R(0)
        else:
            raise ValueError('unknown instruction: ' + text)

class Asm:
    def __init__(s, timed=True):
        s.timed = timed
        s.items = []
        s.reset_state()
        s.nops_inserted = 0
        s.waits_inserted = 0
        s.est = 0
        s.est_mfma = -100
    def reset_state(s):
        s.slot = 0
        s.last_mfma = (-100, 0)
        s.valu_w = {}
        s.trans_w = {}
        s.mfma_w = {}
        s.mfma_c = {}
        s.salu_m0 = -100
        s.store_d = {}
        s.vm = []
        s.lg = []
        s.lg_smem = False
    def raw(s, line): s.items.append(line)
    def comment(s, c): s.items.append('; ' + c)
    def label(s, name):
        s.items.append(name + ':')
    def _emit(s, text, states=1):
        s.items.append('    ' + text); s.slot += states
        op = text.split()[0]
        if op.startswith('v_mfma') or op.startswith('v_smfmac'):
            dur = 32 if '32x32' in op else 16
            s.est = max(s.est, s.est_mfma); s.est_mfma = s.est + dur
            s.est += 12 if op.startswith('v_smfmac') else 8
        elif op == 's_nop': s.est += 4 * states
        elif 'permlane' in op or any(op.startswith(t) for t in TRANS): s.est += 8
        elif op.startswith('ds_write_b128'): s.est += 8
        elif op.startswith('buffer_') and 'x4' in op and 'store' in op: s.est += 16
        elif op.startswith('buffer_'): s.est += 8
        else: s.est += 4
    def nop(s, n):
        while n > 0:
            k = min(n, 16); s._emit(f's_nop {k-1}', k); n -= k
    def _need(s, ins):
        need = 0
        cur = s.slot
        if ins.kind == 'mfma' and s.timed:
            cur = max(cur, s.last_mfma[0] + s.last_mfma[1])
        def req(since, k):
            nonlocal need
            gap = cur - since - 1
            if gap < k: need = max(need, k - gap + (cur - s.slot))
        def reqm(since, k):
            req(since, k + (1 if s.timed else 0))
        uses, defs = ins.uses, ins.defs
        if ins.kind == 'mfma':
            for r in ins.uses:
                if r in s.valu_w: req(s.valu_w[r], 2)
            dt = tuple(ins.defs)
            for r in ins.cuse:
                if r in s.mfma_w:
                    sl, p, d = s.mfma_w[r]
                    if d == tuple(ins.cuse) and p == ins.passes: pass
                    else: reqm(sl, p + 2)
            for r in ins.abuse:
                if r in s.mfma_w:
                    sl, p, d = s.mfma_w[r]; reqm(sl, p + 4)
            for r in ins.defs:
                if r in s.mfma_w and r not in ins.cuse:
                    sl, p, d = s.mfma_w[r]
                    if d != dt: reqm(sl, p + 2)
        else:
            for r in uses + defs:
                if r in s.mfma_w and ins.kind in ('valu', 'ds', 'vm'):
                    sl, p, d = s.mfma_w[r]; reqm(sl, p + 4)
            if ins.kind == 'valu':
                for r in defs:
                    if r in s.mfma_c:
                        sl, p = s.mfma_c[r]; reqm(sl, p - 1)
                    if r in s.store_d: req(s.store_d[r], 2)
                istrans = any(ins.op.startswith(t) for t in TRANS)
                for r in uses:
                    if r in s.trans_w and not istrans: req(s.trans_w[r], 1)
                    if r[0] == 's' and r in s.valu_w:
                        req(s.valu_w[r], 4 if ('readlane' in ins.op or 'writelane' in ins.op) else 2)
                    if r[0] in 'va' and r in s.valu_w:
                        if 'permlane' in ins.op or ins.dpp: req(s.valu_w[r], 2)
                        if 'readlane' in ins.op or 'readfirstlane' in ins.op: req(s.valu_w[r], 1)
            if ins.kind in ('ds', 'vm'):
                for r in defs:
                    if r in s.store_d: req(s.store_d[r], 1)
            if ins.kind == 'vm':
                for r in ins.addr_s:
                    if r in s.valu_w: req(s.valu_w[r], 5)
                if ('s', 'm0') in uses: req(s.salu_m0, 1)
            if ins.kind in ('salu', 'smem'):
                for r in uses:
                    if r in s.valu_w: req(s.valu_w[r], 2)
        return need
    def _waits(s, ins):
        regs = set(ins.uses) | set(ins.defs)
        nvm = None
        for i, d in enumerate(s.vm):
            if d & regs: nvm = len(s.vm) - 1 - i
        nlg = None
        for i, d in enumerate(s.lg):
            if d & regs: nlg = len(s.lg) - 1 - i
        if nlg is not None and s.lg_smem: nlg = 0
        if nvm is not None or nlg is not None:
            s.wait(vm=nvm, lg=nlg); s.waits_inserted += 1
    def wait(s, vm=None, lg=None):
        parts = []
        if vm is not None:
            vm = min(vm, 63)
            if vm < len(s.vm) or True:
                parts.append(f'vmcnt({vm})'); s.vm = s.vm[len(s.vm) - vm:] if vm else []
        if lg is not None:
            lg = min(lg, 15)
            parts.append(f'lgkmcnt({lg})'); s.lg = s.lg[len(s.lg) - lg:] if lg else []
            if lg == 0: s.lg_smem = False
        if parts: s._emit('s_waitcnt ' + ' '.join(parts))
    def flush_hazards(s):
        need = 0
        for r, (sl, p, d) in s.mfma_w.items(): need = max(need, p + 5 - (s.slot - sl - 1))
        for r, sl in s.valu_w.items():
            if r == ('s', 'vcc'): continue
            need = max(need, (5 if r[0] == 's' else 2) - (s.slot - sl - 1))
        for r, sl in s.trans_w.items(): need = max(need, 1 - (s.slot - sl - 1))
        for r, sl in s.store_d.items(): need = max(need, 2 - (s.slot - sl - 1))
        if need > 0: s.nop(need); s.nops_inserted += need
    def __call__(s, text, nowait=False):
        for line in text.split('\n'):
            line = line.strip()
            if not line: continue
            if line.startswith(';'): s.items.append(line); continue
            if line.endswith(':'): s.label(line[:-1]); continue
            ins = Ins(line)
            if ins.op == 's_nop':
                k = int(ins.ops[0]) + 1; s._emit(line, k); continue
            if ins.op == 's_waitcnt':
                vm = re.search(r'vmcnt\((\d+)\)', line); lg = re.search(r'lgkmcnt\((\d+)\)', line)
                s.wait(int(vm.group(1)) if vm else None, int(lg.group(1)) if lg else None); continue
            if not nowait: s._waits(ins)
            n = s._need(ins)
            if n > 0: s.nop(n); s.nops_inserted += n
            if ins.kind == 'branch': s.flush_hazards()
            if ins.kind == 'mfma' and s.timed:
                s.slot = max(s.slot, s.last_mfma[0] + s.last_mfma[1])
            s._emit(line)
            me = s.slot - 1
            if ins.kind == 'mfma' and s.timed:
                s.last_mfma = (me, ins.passes); s.slot += 1
            if ins.kind == 'valu':
                for r in ins.defs:
                    s.valu_w[r] = me; s.mfma_w.pop(r, None)
                    if any(ins.op.startswith(t) for t in TRANS): s.trans_w[r] = me
                    else: s.trans_w.pop(r, None)
            elif ins.kind == 'mfma':
                dt = tuple(ins.defs)
                for r in ins.defs:
                    s.mfma_w[r] = (me, ins.passes, dt); s.valu_w.pop(r, None)
                for r in ins.cuse: s.mfma_c[r] = (me, ins.passes)
            elif ins.kind == 'salu':
                for r in ins.defs:
                    s.valu_w.pop(r, None)
                    if r == ('s', 'm0'): s.salu_m0 = me
            elif ins.kind == 'ds':
                s.lg.append(set(ins.defs))
                for r in ins.defs: s.valu_w.pop(r, None); s.mfma_w.pop(r, None)
            elif ins.kind == 'smem':
                s.lg.append(set(ins.defs)); s.lg_smem = True
                for r in ins.defs: s.valu_w.pop(r, None)
            elif ins.kind == 'vm':
                s.vm.append(set(ins.defs))
                for r in ins.defs: s.valu_w.pop(r, None); s.mfma_w.pop(r, None)
                if 'store' in ins.op and ('x4' in ins.op or 'x3' in ins.op):
                    for r in parse_reg(ins.ops[0]): s.store_d[r] = me
            if s.slot % 64 == 0: s._prune()
    def _prune(s):
        lim = s.slot - 32
        s.valu_w = {k: v for k, v in s.valu_w.items() if v > lim}
        s.trans_w = {k: v for k, v in s.trans_w.items() if v > lim}
        s.mfma_w = {k: v for k, v in s.mfma_w.items() if v[0] > lim}
        s.mfma_c = {k: v for k, v in s.mfma_c.items() if v[0] > lim}
        s.store_d = {k: v for k, v in s.store_d.items() if v > lim}
    def assume_drained(s):
        s.vm = []; s.lg = []; s.lg_smem = False
    def text(s): return '\n'.join(s.items) + '\n'

def vr(a, n=1): return f'v{a}' if n == 1 else f'v[{a}:{a+n-1}]'
def ar(a, n=1): return f'a{a}' if n == 1 else f'a[{a}:{a+n-1}]'
def sr(a, n=1): return f's{a}' if n == 1 else f's[{a}:{a+n-1}]'
def interleave(main, fill, per=2, start=0):
    out = []; fi = 0
    for i, m in enumerate(main):
        out.append(m)
        if i >= start:
            for _ in range(per):
                if fi < len(fill): out.append(fill[fi]); fi += 1
    out += fill[fi:]
    return out
```

```python
from asmlib import *
from layout import *

S_PART, S_MEM, S_KV, S_KM, S_TMP = 4, 8, 12, 16, 20
sH, sW, sStep = 24, 25, 26
sMemOff, sPartOff, sPartPrev, sKVnext, sKVwarm, sKMoff = 27, 28, 29, 30, 31, 32
sBudget = 33
sA, sB, sC, sD = 34, 35, 36, 37
S_FLG = 40
sMaskB2 = 44
sMaskB1 = 46
sMaskB0 = 48
sCexp = 50
sP = 52
sE = 56
sMemOffG = 51
sKV0 = 98
sP2 = 29
sP3 = 96
sMaskW = 54
sRstCur = 53
sFlag = 39
sMemRst = 38
sHPunused = 99
sRst = 59
vGoff, vL16, vWb, vPst, vRld, vMst, vL8, vSwX, vSw0, vOw, vIdx, vWarm, vL4 = range(1, 14)
vSel = 14
PA = 16
ONES = 20
vSelR = 24
PB = 28
M = 30
X = 62
aQ = 94; aK = 102; aV = 110
Kx = 118; Vx = 126
T = 134

STREAMED = [('q', 0), ('q', 1), ('k', 6), ('k', 7), ('v', 6), ('v', 7), ('o', 0, 0), ('o', 1, 0), ('o', 1, 3)]
ALLU = [('q', t) for t in range(8)] + [('k', t) for t in range(8)] + [('v', t) for t in range(8)] + \
       [('o', tp, cp) for cp in range(4) for tp in range(2)]
RESIDENT = [u for u in ALLU if u not in STREAMED]
assert len(RESIDENT) == 23
def res_regs(u):
    i = RESIDENT.index(u)
    if i < 16: return ('a', 16 * i)
    return ('v', 144 + 16 * (i - 16))
ORDER = RESIDENT + STREAMED
def stream_slot(u): return ORDER.index(u) % 9
def opreg(u, ft):
    c, b = res_regs(u)
    return f'{c}[{b + 8*ft}:{b + 8*ft + 7}]'
def xop(k):
    return f'v[{X + 8*k}:{X + 8*k + 7}]'
def stream_reads(u, k0):
    sl = stream_slot(u) * 4096
    out = []
    for ft in range(2):
        for H in range(2):
            r = X + 8 * (k0 + ft) + 4 * H
            out.append(f'ds_read_b128 v[{r}:{r+3}], v{vWb} offset:{sl + ft*2048 + H*1024}')
    return out
def smf(d, a, b): return f'v_smfmac_f32_16x16x64_bf16 {vr(d,4)}, {vr(a,4)}, {b}, v{vIdx}'

def srd(a, s, base_lo, base_hi, off, size):
    a(f's_add_u32 s{s}, s{base_lo}, {off}')
    a(f's_addc_u32 s{s+1}, s{base_hi}, 0')
    a(f's_mov_b32 s{s+2}, {size}')
    a(f's_mov_b32 s{s+3}, 0x20000')

def lane_consts(a, tmp=T):
    l, n, g, t1, t2, t3, t4 = tmp, tmp+1, tmp+2, tmp+3, tmp+4, tmp+5, tmp+6
    a(f'v_and_b32 v{l}, 63, v0')
    a(f'v_and_b32 v{n}, 15, v{l}')
    a(f'v_lshrrev_b32 v{g}, 4, v{l}')
    a(f'v_lshlrev_b32 v{vL16}, 4, v{l}')
    a(f'v_lshlrev_b32 v{vL8}, 3, v{l}')
    a(f'v_lshlrev_b32 v{vL4}, 2, v{l}')
    a(f'v_lshlrev_b32 v{vWarm}, 7, v{l}')
    a(f's_lshl_b32 s{sA}, s{sW}, 11')
    a(f'v_add_u32 v{vGoff}, s{sA}, v{vL16}')
    a(f's_mul_i32 s{sA}, s{sW}, {LDS_WREG}')
    a(f's_add_u32 s{sA}, s{sA}, {LDS_W}')
    a(f'v_add_u32 v{vWb}, s{sA}, v{vL16}')
    a(f'v_lshrrev_b32 v{t1}, 2, v{n}')
    a(f's_lshl_b32 s{sA}, s{sW}, 3')
    a(f'v_add_u32 v{t1}, s{sA}, v{t1}')
    a(f'v_lshlrev_b32 v{t1}, 13, v{t1}')
    a(f'v_and_b32 v{t2}, 3, v{n}'); a(f'v_lshlrev_b32 v{t2}, 3, v{t2}')
    a(f'v_lshl_add_u32 v{t2}, v{g}, 5, v{t2}')
    a(f'v_add_u32 v{vPst}, v{t1}, v{t2}')
    a(f's_lshl_b32 s{sA}, s{sH}, 7')
    a(f'v_add_u32 v{vPst}, s{sA}, v{vPst}')
    a(f'v_bfe_u32 v{t1}, v{n}, 1, 2'); a(f'v_lshlrev_b32 v{t1}, 2, v{t1}')
    a(f'v_bfe_u32 v{t4}, v{n}, 3, 1'); a(f'v_add_u32 v{t1}, v{t1}, v{t4}')
    a(f'v_lshlrev_b32 v{t1}, 4, v{t1}')
    a(f'v_and_b32 v{t4}, 1, v{n}'); a(f'v_lshl_add_u32 v{t1}, v{t4}, 3, v{t1}')
    a(f'v_and_b32 v{t2}, 1, v{g}'); a(f'v_lshl_add_u32 v{t1}, v{t2}, 2, v{t1}')
    a(f's_lshl_b32 s{sA}, s{sH}, 8')
    a(f's_and_b32 s{sB}, s{sW}, 1'); a(f's_lshl_b32 s{sB}, s{sB}, 5'); a(f's_add_u32 s{sB}, s{sB}, s{sA}')
    a(f'v_add_u32 v{vMst}, s{sB}, v{t1}')
    a(f'v_lshlrev_b32 v{t2}, 3, v{t2}')
    a(f'v_lshrrev_b32 v{t3}, 1, v{g}')
    a(f'v_lshl_add_u32 v{t1}, v{t3}, 4, v{n}')
    a(f'v_lshl_add_u32 v{t1}, v{t1}, 4, v{t2}')
    a(f's_lshr_b32 s{sB}, s{sW}, 1'); a(f's_lshl_b32 s{sB}, s{sB}, 10')
    a(f's_and_b32 s{sC}, s{sW}, 1'); a(f's_lshl_b32 s{sC}, s{sC}, 9')
    a(f's_add_u32 s{sB}, s{sB}, s{sC}'); a(f's_add_u32 s{sB}, s{sB}, {LDS_OB}')
    a(f'v_add_u32 v{vOw}, s{sB}, v{t1}')
    a(f's_lshl_b32 s{sA}, s{sH}, 13'); a(f's_and_b32 s{sB}, s{sW}, 1'); a(f's_lshl_b32 s{sB}, s{sB}, 12'); a(f's_add_u32 s{sB}, s{sA}, s{sB}')
    a(f'v_add_u32 v{vRld}, s{sB}, v{vL16}')
    a(f's_lshl_b32 s{sB}, s{sW}, 11'); a(f's_add_u32 s{sRst}, s{sA}, s{sB}')
    a(f's_lshl_b32 s{sA}, s{sW}, 10'); a(f's_add_u32 s{sA}, s{sA}, {LDS_SX}')
    a(f'v_add_u32 v{vSwX}, s{sA}, v{vL16}')
    a(f's_lshl_b32 s{sA}, s{sW}, 9'); a(f's_add_u32 s{sA}, s{sA}, {LDS_S0}')
    a(f'v_add_u32 v{vSw0}, s{sA}, v{vL8}')
    a(f's_mov_b32 s{sMaskB1}, 0xcccccccc'); a(f's_mov_b32 s{sMaskB1+1}, 0xcccccccc')
    a(f's_mov_b32 s{sMaskB0}, 0x33333333'); a(f's_mov_b32 s{sMaskB0+1}, 0x33333333')
    a(f's_mov_b32 s{sMaskB2}, 0xff00ff00'); a(f's_mov_b32 s{sMaskB2+1}, 0xff00ff00')
    a(f's_mov_b32 s{sCexp}, 0x3e0293ee')
    a(f'v_mov_b32 v{vIdx}, 0x4444'); a(f'v_mov_b32 v{t1}, 0xeeee')
    a(f'v_cndmask_b32 v{vIdx}, v{vIdx}, v{t1}, s[{sMaskB1}:{sMaskB1+1}]')
    a(f'v_mov_b32 v{t1}, 0x3f80'); a(f'v_mov_b32 v{t2}, 0x3f800000')
    a(f'v_and_b32 v{t3}, 1, v{n}'); a(f'v_cmp_eq_u32 vcc, 1, v{t3}')
    a(f'v_cndmask_b32 v{t1}, v{t1}, v{t2}, vcc')
    a(f'v_lshrrev_b32 v{t3}, 2, v{n}'); a(f'v_cmp_eq_u32 vcc, v{t3}, v{g}')
    a(f'v_cndmask_b32 v{vSel}, 0, v{t1}, vcc')
    a(f'v_mov_b32 v{vSel+1}, v{vSel}')
    for r in range(4): a(f'v_mov_b32 v{PA+r}, 0')
    for r in range(2): a(f'v_mov_b32 v{PB+r}, 0')
    for r in range(4): a(f'v_mov_b32 v{ONES+r}, 0x3f803f80')
    a(f'v_mov_b32 v{t1}, 0x3f80'); a(f'v_mov_b32 v{t2}, 0x3f800000')
    for q in range(4):
        a(f'v_mov_b32 v{vSelR+q}, 0')
        a(f'v_cmp_eq_u32 vcc, {2*q}, v{n}')
        a(f'v_cndmask_b32 v{vSelR+q}, v{vSelR+q}, v{t1}, vcc')
        a(f'v_cmp_eq_u32 vcc, {2*q+1}, v{n}')
        a(f'v_cndmask_b32 v{vSelR+q}, v{vSelR+q}, v{t2}, vcc')

def load_weights(a, pWq, pWk, pWv, pWo):
    vRowA, vRowB, vTr = T, T+1, T+2
    l, t1, t2, t3 = T+3, T+4, T+5, T+6
    a(f'v_and_b32 v{l}, 63, v0')
    def bits(dst, spec):
        first = True
        for b, sh in spec:
            if first: a(f'v_bfe_u32 v{dst}, v{l}, {b}, 1'); a(f'v_lshlrev_b32 v{dst}, {sh}, v{dst}'); first = False
            else: a(f'v_bfe_u32 v{t3}, v{l}, {b}, 1'); a(f'v_lshl_add_u32 v{dst}, v{t3}, {sh}, v{dst}')
    a(f'v_and_b32 v{t2}, 3, v{l}'); a(f'v_lshlrev_b32 v{t2}, 4, v{t2}')
    bits(t1, [(3, 6), (2, 4), (4, 0), (5, 1)])
    a(f'v_lshl_add_u32 v{vRowA}, v{t1}, 13, v{t2}')
    bits(t1, [(5, 2), (4, 1), (3, 4), (2, 0)])
    a(f'v_lshl_add_u32 v{vRowB}, v{t1}, 10, v{t2}')
    a(f'v_lshrrev_b32 v{t1}, 4, v{l}'); a(f'v_lshlrev_b32 v{t1}, 3, v{t1}')
    a(f'v_bfe_u32 v{t2}, v{l}, 2, 2'); a(f'v_add_u32 v{t1}, v{t1}, v{t2}')
    a(f'v_and_b32 v{t2}, 3, v{l}'); a(f'v_lshlrev_b32 v{t2}, 3, v{t2}')
    a(f'v_lshl_add_u32 v{vTr}, v{t1}, 6, v{t2}')
    a(f's_mul_i32 s{sA}, s{sW}, {LDS_WREG}'); a(f's_add_u32 s{sE}, s{sA}, {LDS_W}')
    a(f'v_add_u32 v{vTr}, s{sE}, v{vTr}')
    a(f's_lshl_b32 s{sA}, s{sH}, 8'); a(f's_lshl_b32 s{sB}, s{sW}, 6'); a(f's_add_u32 s{sC}, s{sA}, s{sB}')
    a(f's_lshl_b32 s{sA}, s{sH}, 17'); a(f's_lshl_b32 s{sB}, s{sW}, 8'); a(f's_add_u32 s{sD}, s{sA}, s{sB}')
    cur = [None]
    def issue(idx):
        u = ORDER[idx]; slot = idx % 9
        m = u[0]
        if cur[0] != m:
            p = {'q': pWq, 'k': pWk, 'v': pWv, 'o': pWo}[m]
            a(f's_mov_b32 s{S_TMP}, s{p}'); a(f's_mov_b32 s{S_TMP+1}, s{p+1}')
            a(f's_mov_b32 s{S_TMP+2}, 0x400000'); a(f's_mov_b32 s{S_TMP+3}, 0x20000')
            cur[0] = m
        for i in range(4):
            if m == 'o':
                off = (64*u[1] + 32*(i >> 1) + 8*(i & 1))*1024 + u[2]*64
                a(f's_add_u32 s{sA}, s{sD}, {off}'); vo = vRowB
            else:
                off = (128*(u[1] >> 1) + 32*(u[1] & 1) + 8*(i >> 1) + 4*(i & 1))*8192
                a(f's_add_u32 s{sA}, s{sC}, {off}'); vo = vRowA
            a(f's_add_u32 m0, s{sE}, {slot*4096 + i*1024}')
            a(f'buffer_load_dwordx4 v{vo}, s[{S_TMP}:{S_TMP+3}], s{sA} offen lds')
    def consume(idx):
        u = ORDER[idx]; slot = idx % 9
        streamed = u in STREAMED
        for ft in range(2):
            for H in range(2):
                for p in range(2):
                    if streamed: c, b = 'v', X
                    else: c, b = res_regs(u)
                    r = b + 8*ft + 4*H + 2*p
                    a(f'ds_read_b64_tr_b16 {c}[{r}:{r+1}], v{vTr} offset:{slot*4096 + H*2048 + p*256 + ft*32}')
        a.wait(lg=0)
        if streamed:
            for ft in range(2):
                for H in range(2):
                    r = X + 8*ft + 4*H
                    a(f'ds_write_b128 v{vWb}, v[{r}:{r+3}] offset:{slot*4096 + ft*2048 + H*1024}')
            a.wait(lg=0)
    n = len(ORDER)
    base_vm = len(a.vm)
    for i in range(9): issue(i)
    for i in range(n):
        later = min(n, i + 9) - (i + 1)
        a.wait(vm=4*later)
        consume(i)
        if i + 9 < n: issue(i + 9)

def masked_poll(a, L, ldA, ldB, rA, rB, dense=0):
    mA, mB = 60, 62
    a(ldA); a(ldB)
    def check(n0, n1):
        a.wait(vm=n0)
        a(f'v_max3_u32 v{T}, v{rA}, v{rA+1}, v{rA+2}', nowait=True); a(f'v_max_u32 v{T}, v{T}, v{rA+3}', nowait=True)
        a(f'v_cmp_eq_u32 s[{mA}:{mA+1}], -1, v{T}')
        a.wait(vm=n1)
        a(f'v_max3_u32 v{T+1}, v{rB}, v{rB+1}, v{rB+2}', nowait=True); a(f'v_max_u32 v{T+1}, v{T+1}, v{rB+3}', nowait=True)
        a(f'v_cmp_eq_u32 s[{mB}:{mB+1}], -1, v{T+1}')
    if not dense:
        a(f'{L}_poll:')
        check(1, 0)
    else:
        check(1, 0)
        a(f's_or_b64 vcc, s[{mA}:{mA+1}], s[{mB}:{mB+1}]')
        a(f's_cbranch_scc0 {L}_first')
        a(f's_mov_b64 exec, s[{mA}:{mA+1}]'); a(ldA, nowait=True)
        a(f's_mov_b64 exec, s[{mB}:{mB+1}]'); a(ldB, nowait=True)
        a(f's_mov_b64 exec, -1')
        a(f's_sleep {dense}') if dense < 10 else None
        a(f'{L}_poll:')
        a(f's_mov_b64 exec, s[{mA}:{mA+1}]'); a(ldA, nowait=True)
        a(f's_mov_b64 exec, s[{mB}:{mB+1}]'); a(ldB, nowait=True)
        a(f's_mov_b64 exec, -1')
        a.vm = [set(), set(), set(), set()]
        check(3, 2)
        a(f's_or_b64 vcc, s[{mA}:{mA+1}], s[{mB}:{mB+1}]')
        a(f's_cbranch_scc0 {L}_first')
        a(f's_cmp_eq_u32 s{sBudget}, 0'); a(f's_cbranch_scc1 {L}_first')
        a(f's_sub_u32 s{sBudget}, s{sBudget}, 1')
        if a.cnt: a(f's_add_u32 s{a.cnt}, s{a.cnt}, 1')
        a(f's_branch {L}_poll')
        a(f'{L}_first:')
        a.vm = []
    return mA, mB

def masked_retry(a, L, ldA, ldB, rA, rB, mA, mB, cnt=None, dense=0):
    if dense: return
    a(f's_or_b64 vcc, s[{mA}:{mA+1}], s[{mB}:{mB+1}]')
    a(f's_cbranch_scc0 {L}_ok')
    a(f's_cmp_eq_u32 s{sBudget}, 0')
    a(f's_cbranch_scc1 {L}_ok')
    a(f's_sub_u32 s{sBudget}, s{sBudget}, 1')
    if cnt: a(f's_add_u32 s{cnt}, s{cnt}, 1')
    a(f's_mov_b64 exec, s[{mA}:{mA+1}]'); a(ldA, nowait=True)
    a(f's_mov_b64 exec, s[{mB}:{mB+1}]'); a(ldB, nowait=True)
    a(f's_mov_b64 exec, -1')
    a.vm = [set(('v', rA+i) for i in range(4)), set(('v', rB+i) for i in range(4))]
    a(f's_branch {L}_poll')
    a(f'{L}_ok:')
    a.vm = []

def zero_regs(base, n):
    return [f'v_mov_b64 v[{base+2*i}:{base+2*i+1}], 0' for i in range(n//2)]


def weave(a, spine, fills):
    for i, x in enumerate(spine):
        a(x)
        for y in fills.get(i, []): a(y)

def chain_loop(a, L, fast, stamps=None, opt=None):
    opt = opt or {}
    ST = '' if fast else 'sc1'
    LD = 'sc1'
    est0 = [0]
    pts = opt.get('pts')
    def st(k):
        if opt.get('verbose') and fast: print(f'  est phase ->{k}: {a.est - est0[0]}');
        est0[0] = a.est
        if pts:
            if k in pts:
                i = pts.index(k); a(f'{"s_memrealtime" if opt.get("snap") else "s_memtime"} s[{64+2*i}:{65+2*i}]', nowait=True); a.lg_smem = False; a.lg.pop()
            return
        if not isinstance(k, int): return
        if stamps and (stamps is True or k in stamps): a(f's_memtime s[{64+2*k}:{65+2*k}]', nowait=True); a.lg_smem = False; a.lg.pop()
    Mt = lambda t: M + 4*t
    qop, kop = T, T+4
    XT, T0T, tA, tB, tL = T, T+4, T+6, T+7, T+8
    vDummy = T+9
    PX, DEN = aQ, aK
    def mread(t): return f'ds_read_b128 {vr(Mt(t),4)}, v{vL16} offset:{LDS_MEM + 1024*t}'
    def post_a(acc):
        return [f'v_add_f32 v{acc}, v{acc}, v{acc+2}', f'v_add_f32 v{acc+1}, v{acc+1}, v{acc+3}',
                f'v_cvt_pk_bf16_f32 v{PA}, v{acc}, v{acc+1}',
                f'v_add_f32 v{acc+4}, v{acc+4}, v{acc+6}', f'v_add_f32 v{acc+5}, v{acc+5}, v{acc+7}',
                f'v_cvt_pk_bf16_f32 v{PA+2}, v{acc+4}, v{acc+5}']
    def transp(acc):
        return [f'v_mfma_f32_16x16x16_bf16 {vr(acc+4*ft,4)}, v[{PA+2*ft}:{PA+2*ft+1}], v[{vSel}:{vSel+1}], 0' for ft in range(2)]
    def post_b(acc, b):
        return [f'v_cvt_pk_bf16_f32 v{b+2*ft+h}, v{acc+4*ft+2*h}, v{acc+4*ft+2*h+1}' for ft in range(2) for h in range(2)]
    a(f'{L}_step:')
    a.assume_drained()
    if opt.get('wait_kv'):
        from common import spin_flag
        a(f's_cmp_lg_u32 s{sStep}, 10'); a(f's_cbranch_scc1 {L}_nokvw')
        a(f's_mov_b32 s{sA}, {F_KV}'); a(f's_mov_b32 s{sB}, 224')
        spin_flag(a, f'{L}_wkv2', S_FLG, sA, sB, sBudget, T)
        a(f'{L}_nokvw:')
    st(0)
    for t in range(3): a(mread(t))
    kvs = S_MEM if opt.get('nokv') else S_KV
    warm = [f's_mov_b64 exec, s[{sMaskW}:{sMaskW+1}]',
            f'buffer_load_dword v{vDummy}, v{vWarm}, s[{kvs}:{kvs+3}], s{sKVwarm} offen',
            f's_mov_b64 exec, -1']
    for x in warm: a(x)
    spine = [smf(aQ, Mt(0), xop(0)), smf(aQ+4, Mt(0), xop(1)), smf(aQ, Mt(1), xop(2)), smf(aQ+4, Mt(1), xop(3))]
    for t in range(2, 8): spine += [smf(aQ, Mt(t), opreg(('q', t), 0)), smf(aQ+4, Mt(t), opreg(('q', t), 1))]
    fills = {i: [mread(3+i)] for i in range(5)}
    sr = stream_reads(('k', 6), 0) + stream_reads(('k', 7), 2)
    for i, x in enumerate(sr): fills[5+i] = [x]
    fills[13] = [f'v_mov_b32 v{T+8}, s{sStep}']
    fills[14] = [f'buffer_store_dword v{T+8}, v{PA+1}, s[{S_FLG}:{S_FLG+3}], s{sFlag} offen sc1']
    weave(a, spine, fills)
    st(1)
    spine = []
    for t in range(6): spine += [smf(aK, Mt(t), opreg(('k', t), 0)), smf(aK+4, Mt(t), opreg(('k', t), 1))]
    spine += [smf(aK, Mt(6), xop(0)), smf(aK+4, Mt(6), xop(1)), smf(aK, Mt(7), xop(2)), smf(aK+4, Mt(7), xop(3))]
    pa, tr, pb = post_a(aQ), transp(aQ), post_b(aQ, qop)
    S1 = f'v_mfma_f32_16x16x32_bf16 {vr(aQ,4)}, {vr(Kx,4)}, {vr(qop,4)}, 0'
    S2 = f'v_mfma_f32_16x16x32_bf16 {vr(aQ+4,4)}, {vr(Kx+4,4)}, {vr(qop,4)}, 0'
    cn = [f'v_cndmask_b32 v{aQ+r}, v{aQ+r}, v{aQ+4+r}, s[{sMaskB1}:{sMaskB1+1}]' for r in range(4)]
    kxl = [f'buffer_load_dwordx4 {vr(Kx+4*kt,4)}, v{vL16}, s[{S_KV}:{S_KV+3}], s{sKVnext} offen offset:{1024*kt}' for kt in range(2)]
    rs = [f'buffer_store_dwordx4 v[{kop}:{kop+3}], v{vL16}, s[{S_PART}:{S_PART+3}], s{sRstCur} offen offset:{1024*i} {ST}' for i in range(2)]
    rsm = f'buffer_store_dword v{kop}, v{vL4}, s[{S_MEM}:{S_MEM+3}], s{sMemRst} offen {ST}'
    if opt.get('nokv'): kxl = [x.replace(f's{sKVnext} offen', f's{sKV0} offen') for x in kxl]
    fills = {0: [rs[0]], 8: [rsm], 1: [pa[0]], 2: [pa[1]], 3: [pa[2]], 4: [pa[3]], 5: [pa[4]], 6: [pa[5], rs[1]],
             7: [tr[0], tr[1]], 9: [pb[0], pb[1]], 10: [pb[2], pb[3]],
             11: [S1, S2], 13: [cn[0], cn[1]], 14: [cn[2], cn[3]], 15: [f'ds_write_b128 v{vSwX}, {vr(aQ,4)}']}
    weave(a, spine, fills)
    st(2)
    spine = []
    for t in range(6): spine += [smf(aV, Mt(t), opreg(('v', t), 0)), smf(aV+4, Mt(t), opreg(('v', t), 1))]
    spine += [smf(aV, Mt(6), xop(0)), smf(aV+4, Mt(6), xop(1)), smf(aV, Mt(7), xop(2)), smf(aV+4, Mt(7), xop(3))]
    pa, tr, pb = post_a(aK), transp(aK), post_b(aK, kop)
    T0m = f'v_mfma_f32_16x16x32_bf16 {vr(aK,4)}, {vr(kop,4)}, {vr(qop,4)}, 0'
    sr = stream_reads(('v', 6), 0) + stream_reads(('v', 7), 2)
    kmst = f'buffer_store_dwordx4 {vr(kop,4)}, v{vL16}, s[{S_KM}:{S_KM+3}], s{sKMoff} offen sc1'
    fills = {0: [sr[0]], 1: [pa[0], pa[1], pa[2]], 2: [pa[3], pa[4], pa[5]], 3: [tr[0], tr[1], sr[1], sr[2]], 4: [sr[3]], 5: [pb[0], pb[1]], 6: [pb[2], pb[3]],
             7: [T0m, sr[4], sr[5]], 8: [sr[6]], 9: [sr[7]], 10: [f'ds_write_b64 v{vSw0}, v[{aK}:{aK+1}]'],
             11: [kxl[0]], 12: [kxl[1]], 13: [kmst]}
    weave(a, spine, fills)
    a.wait(lg=0)
    a('s_barrier')
    st(3)
    for w2 in range(4): a(f'ds_read_b128 {vr(M+4*w2,4)}, v{vL16} offset:{LDS_SX + 1024*w2}')
    for w2 in range(4): a(f'ds_read_b64 v[{M+16+2*w2}:{M+17+2*w2}], v{vL8} offset:{LDS_S0 + 512*w2}')
    for y in post_a(aV): a(y)
    for ft in range(2):
        a(f'buffer_store_dword v{PA+2*ft}, v{vL4}, s[{S_KM}:{S_KM+3}], s{sKMoff} offen offset:{1024+256*ft} sc1')
    a(f's_cmp_eq_u32 s{sStep}, 63'); a(f's_cbranch_scc1 {L}_last')
    def pk(d, x, y): return f'v_pk_add_f32 v[{d}:{d+1}], v[{x}:{x+1}], v[{y}:{y+1}]'
    st('s0')
    b = M
    a(pk(b, b, b+4)); a(pk(b+2, b+2, b+6)); a(pk(b+8, b+8, b+12)); a(pk(b+10, b+10, b+14))
    a(pk(XT, b, b+8)); a(pk(XT+2, b+2, b+10))
    b = M+16
    a(pk(b, b, b+2)); a(pk(b+4, b+4, b+6)); a(pk(T0T, b, b+4))
    osr = stream_reads(('o', 0, 0), 0) + stream_reads(('o', 1, 0), 2)
    zz = zero_regs(M, 32)
    fill = list(osr) + zz
    def F(n=1):
        for _ in range(n):
            if fill: a(fill.pop(0))
    st('s1')
    a(f'v_max3_f32 v{tA}, v{XT}, v{XT+1}, v{XT+2}')
    a(f'v_max3_f32 v{tB}, v{XT+3}, v{T0T}, v{T0T+1}')
    a(f'v_max_f32 v{tA}, v{tA}, v{tB}')
    F(2)
    a(f'v_max_f32_dpp v{tA}, v{tA}, v{tA} quad_perm:[2,3,0,1] row_mask:0xf bank_mask:0xf')
    a(f'v_mov_b32 v{tB}, v{tA}'); F(2); a(f'v_permlane16_swap_b32 v{tB}, v{tA}'); a(f'v_max_f32 v{tA}, v{tA}, v{tB}')
    a(f'v_mov_b32 v{tB}, v{tA}'); F(2); a(f'v_permlane32_swap_b32 v{tB}, v{tA}'); a(f'v_max_f32 v{tA}, v{tA}, v{tB}')
    st('s2')
    a(f'v_mul_f32 v{tA}, s{sCexp}, v{tA}')
    for r in range(2): a(f'v_fma_f32 v{T0T+r}, v{T0T+r}, s{sCexp}, -v{tA}')
    for r in range(4): a(f'v_fma_f32 v{XT+r}, v{XT+r}, s{sCexp}, -v{tA}')
    for r in range(2): a(f'v_exp_f32 v{T0T+r}, v{T0T+r}')
    for r in range(4): a(f'v_exp_f32 v{XT+r}, v{XT+r}')
    a(f'v_cvt_pk_bf16_f32 v{PB}, v{T0T}, v{T0T+1}')
    a(f'v_cvt_pk_bf16_f32 v{PX}, v{XT}, v{XT+1}'); a(f'v_cvt_pk_bf16_f32 v{PX+1}, v{XT+2}, v{XT+3}')
    st('s3')
    a(f'v_mfma_f32_16x16x16_bf16 {vr(DEN,4)}, v[{ONES}:{ONES+1}], v[{PB}:{PB+1}], 0')
    a(f'v_mov_b32_dpp v{PX+2}, v{PX} quad_perm:[2,3,0,1] row_mask:0xf bank_mask:0xf bound_ctrl:0')
    a(f'v_mov_b32_dpp v{PX+3}, v{PX+1} quad_perm:[2,3,0,1] row_mask:0xf bank_mask:0xf bound_ctrl:0')
    a(f'v_mfma_f32_16x16x16_bf16 {vr(aV,4)}, v[{PA}:{PA+1}], v[{PB}:{PB+1}], 0')
    a(f'v_mfma_f32_16x16x32_bf16 {vr(DEN,4)}, {vr(ONES,4)}, {vr(PX,4)}, {vr(DEN,4)}')
    a(f'v_mfma_f32_16x16x16_bf16 {vr(aV+4,4)}, v[{PA+2}:{PA+3}], v[{PB}:{PB+1}], 0')
    F(1)
    a(f'v_mfma_f32_16x16x32_bf16 {vr(aV,4)}, {vr(Vx,4)}, {vr(PX,4)}, {vr(aV,4)}'); F(1)
    a(f'v_mfma_f32_16x16x32_bf16 {vr(aV+4,4)}, {vr(Vx+4,4)}, {vr(PX,4)}, {vr(aV+4,4)}')
    a(f'v_rcp_f32 v{tL}, v{DEN}')
    for ft in range(2):
        a(f'buffer_load_dwordx4 {vr(Vx+4*ft,4)}, v{vL16}, s[{S_KV}:{S_KV+3}], s{sKV0 if opt.get("nokv") else sKVnext} offen offset:{2048+1024*ft}')
    F(4)
    st('s4')
    for r in range(8): a(f'v_mul_f32 v{aV+r}, v{aV+r}, v{tL}')
    for ft in range(2):
        for h in range(2): a(f'v_cvt_pk_bf16_f32 v{T+2*ft+h}, v{aV+4*ft+2*h}, v{aV+4*ft+2*h+1}')
    a(f's_mov_b64 exec, s[{sMaskB0}:{sMaskB0+1}]')
    for ft in range(2): a(f'ds_write_b64 v{vOw}, v[{T+2*ft}:{T+2*ft+1}] offset:{32*ft}')
    a(f's_mov_b64 exec, -1')
    st('s5')
    F(99)
    a(f's_add_u32 s{sP}, s{sPartOff}, 32768'); a(f's_add_u32 s{sP2}, s{sPartOff}, 4096'); a(f's_add_u32 s{sP3}, s{sPartOff}, {32768+4096}')
    a.wait(lg=0)
    a('s_barrier')
    st(4)
    oo = aQ
    for tp in range(2): a(f'ds_read_b128 {vr(oo+4*tp,4)}, v{vL16} offset:{LDS_OB + 1024*tp}')
    a.wait(lg=1)
    st('w0')
    def wo(cp):
        D0, D1 = M + 8*cp, M + 8*cp + 4
        def op(tp, ft):
            u = ('o', tp, cp)
            if u in STREAMED:
                k0 = {('o',0,0): 0, ('o',1,0): 2, ('o',1,3): 0}[u]
                return xop(k0 + ft)
            return opreg(u, ft)
        return [smf(D0, oo, op(0, 0)), smf(D1, oo, op(0, 1)), smf(D0, oo+4, op(1, 0)), smf(D1, oo+4, op(1, 1))]
    def epi(cp):
        D0, D1 = M + 8*cp, M + 8*cp + 4
        return [f'v_add_f32 v{D0}, v{D0}, v{D0+2}', f'v_add_f32 v{D0+1}, v{D0+1}, v{D0+3}',
                f'v_add_f32 v{D1}, v{D1}, v{D1+2}', f'v_add_f32 v{D1+1}, v{D1+1}, v{D1+3}',
                f'v_cvt_pk_bf16_f32 v{D0}, v{D0}, v{D0+1}', f'v_cvt_pk_bf16_f32 v{D0+1}, v{D1}, v{D1+1}',
                f'buffer_store_dwordx2 v[{D0}:{D0+1}], v{vPst}, s[{S_PART}:{S_PART+3}], s{[sPartOff, sP, sP2, sP3][cp]} offen {ST}']
    spine = wo(0) + wo(1) + wo(2) + wo(3)
    d = stream_reads(('o', 1, 3), 0)
    e0, e1, e2, e3 = epi(0), epi(1), epi(2), epi(3)
    fills = {1: [d[0], d[1]], 2: [d[2]], 3: [d[3]], 5: [e0[0], e0[1]], 6: [e0[2], e0[3]], 7: [e0[4], e0[5]], 8: [e0[6]],
             9: [e1[0], e1[1]], 10: [e1[2], e1[3]], 11: [e1[4], e1[5]], 12: [e1[6]],
             13: [e2[0], e2[1]], 14: [e2[2], e2[3]], 15: [e2[4], e2[5], e2[6]]}
    weave(a, spine, fills)
    st('w1')
    zq = zero_regs(aQ, 24)
    for z in zq[4:]: a(z)
    for y in e3[:-1]: a(y)
    a(e3[-1])
    st(5)
    qsr = stream_reads(('q', 0), 0) + stream_reads(('q', 1), 2)
    for z in zq[:4]: a(z)
    for x in qsr: a(x)
    if opt.get('ack') is not None:
        a(f's_cmp_lt_u32 s{sW}, {opt["ack"]}'); a(f's_cbranch_scc1 {L}_noack')
        a._emit('s_waitcnt vmcnt(0)')
        a(f'{L}_noack:')
    if opt.get('rsleep', 0): a(f's_sleep {opt["rsleep"]}')
    st('r1')
    a(f's_mov_b32 s{sMemOffG}, s{sMemOff}')
    a(f's_add_u32 s{sStep}, s{sStep}, 1')
    a(f's_cmp_ge_u32 s{sW}, 2'); a(f's_cbranch_scc1 {L}_nored')
    lds_ = [f'buffer_load_dwordx4 {vr(M+4*i,4)}, v{vRld}, s[{S_PART}:{S_PART+3}], s{sPartOff} offen offset:{1024*i} {LD}' for i in range(4)]
    a.vm = []
    for x in lds_: a(x)
    a(f'{L}_r_poll:')
    acc = T+2
    for i in range(4):
        a(f'v_mfma_f32_16x16x32_bf16 {vr(acc,4)}, {vr(vSelR,4)}, {vr(M+4*i,4)}, {"0" if i == 0 else vr(acc,4)}')
    a(f'v_cmp_u_f32 vcc, v{acc}, v{acc+1}'); a(f'v_cmp_u_f32 s[60:61], v{acc+2}, v{acc+3}')
    for r in range(4): a(f'v_add_f32_dpp v{acc+r}, v{acc+r}, v{acc+r} row_ror:8 row_mask:0xf bank_mask:0xf')
    a(f's_or_b64 vcc, vcc, s[60:61]')
    a(f's_cbranch_scc0 {L}_r_ok')
    for i in range(4):
        a(f'v_max3_u32 v{T}, v{M+4*i}, v{M+4*i+1}, v{M+4*i+2}'); a(f'v_max_u32 v{T}, v{T}, v{M+4*i+3}')
        a(f'v_cmp_eq_u32 s[{(60,62,56,36)[i]}:{(60,62,56,36)[i]+1}], -1, v{T}')
    mk = [60, 62, 56, 36]
    a(f's_or_b64 vcc, s[{mk[0]}:{mk[0]+1}], s[{mk[1]}:{mk[1]+1}]'); a(f's_or_b64 vcc, vcc, s[{mk[2]}:{mk[2]+1}]'); a(f's_or_b64 vcc, vcc, s[{mk[3]}:{mk[3]+1}]')
    a(f's_cbranch_scc0 {L}_r_ok')
    a(f's_cmp_eq_u32 s{sBudget}, 0'); a(f's_cbranch_scc1 {L}_r_ok')
    a(f's_sub_u32 s{sBudget}, s{sBudget}, 1')
    if stamps is not None: a(f's_add_u32 s94, s94, 1')
    for i in range(4):
        a(f's_mov_b64 exec, s[{mk[i]}:{mk[i]+1}]'); a(lds_[i], nowait=True)
    a(f's_mov_b64 exec, -1')
    a.vm = [set(('v', M+4*i+k) for k in range(4)) for i in range(4)]
    a(f's_branch {L}_r_poll')
    a(f'{L}_r_ok:')
    a.vm = []
    st('r2')
    a(f'v_cvt_pk_bf16_f32 v{acc}, v{acc}, v{acc+2}'); a(f'v_cvt_pk_bf16_f32 v{acc+1}, v{acc+1}, v{acc+3}')
    a(f'v_cndmask_b32 v{acc}, v{acc}, v{acc+1}, s[{sMaskB2}:{sMaskB2+1}]')
    a(f'v_min_u32 v{acc}, -2, v{acc}')
    a(f's_mov_b32 exec_hi, 0')
    a(f'buffer_store_dword v{acc}, v{vMst}, s[{S_MEM}:{S_MEM+3}], s{sMemOffG} offen {ST}')
    a(f's_mov_b32 exec_hi, -1')
    a(f'{L}_nored:')
    if opt.get('bar', 1): a('s_barrier')
    st(6)
    a(f's_add_u32 s{sMemOff}, s{sMemOff}, 8192'); a(f's_cmp_eq_u32 s{sMemOff}, {3*8192}'); a(f's_cselect_b32 s{sMemOff}, 0, s{sMemOff}')
    a(f's_add_u32 s{sA}, s{sMemOff}, 8192'); a(f's_cmp_eq_u32 s{sA}, {3*8192}'); a(f's_cselect_b32 s{sA}, 0, s{sA}')
    a(f's_lshl_b32 s{sMemRst}, s{sH}, 8'); a(f's_add_u32 s{sMemRst}, s{sMemRst}, s{sA}')
    a(f's_add_u32 s{sRstCur}, s{sRst}, s{sPartOff}')
    a(f's_add_u32 s{sPartOff}, s{sPartOff}, 262144'); a(f's_cmp_eq_u32 s{sPartOff}, {3*262144}'); a(f's_cselect_b32 s{sPartOff}, 0, s{sPartOff}')
    a(f's_add_u32 s{sKVnext}, s{sKVnext}, {32*4*4096}')
    a(f's_add_u32 s{sKVwarm}, s{sKVwarm}, {32*4*4096}')
    a(f's_add_u32 s{sKMoff}, s{sKMoff}, {32*4*2048}')
    for r in range(4): a(f'v_mov_b32 v{T+4+r}, -1')
    if opt.get('gsleep', 0): a(f's_sleep {opt["gsleep"]}')
    ldA = f'buffer_load_dwordx4 v[{M}:{M+3}], v{vGoff}, s[{S_MEM}:{S_MEM+3}], s{sMemOffG} offen {LD}'
    ldB = f'buffer_load_dwordx4 v[{M+4}:{M+7}], v{vGoff}, s[{S_MEM}:{S_MEM+3}], s{sMemOffG} offen offset:1024 {LD}'
    a.vm = [set()]
    dn = opt.get('dense', 0)
    a.cnt = 95 if stamps is not None else None
    mA, mB = masked_poll(a, L + '_g', ldA, ldB, M, M+4, dn)
    a(f'ds_write_b128 v{vGoff}, v[{M}:{M+3}] offset:{LDS_MEM}')
    a(f'ds_write_b128 v{vGoff}, v[{M+4}:{M+7}] offset:{LDS_MEM+1024}')
    masked_retry(a, L + '_g', ldA, ldB, M, M+4, mA, mB, 95 if stamps is not None else None, dn)
    st(7)
    if stamps:
        a.wait(lg=0)
        ks = list(range(len(pts))) if pts else (list(range(8)) if stamps is True else sorted(stamps))
        if opt.get('snap'):
            a(f's_cmp_lg_u32 s{sStep}, {opt["snap"]}'); a(f's_cbranch_scc1 {L}_nosnap')
            for k in ks: a(f's_mov_b32 s{84+k}, s{64+2*k}')
            a(f'{L}_nosnap:')
        else:
          for k0, k1 in zip(ks[:-1], ks[1:]):
            a(f's_sub_u32 s{sA}, s{64+2*k1}, s{64+2*k0}'); a(f's_add_u32 s{84+k0}, s{84+k0}, s{sA}')
            if opt.get('maxes'): a(f's_max_u32 s{88+k0}, s{88+k0}, s{sA}')
    a._emit('s_waitcnt vmcnt(0) lgkmcnt(0)'); a.lg = []; a.vm = []
    a('s_barrier')
    a(f's_branch {L}_step')
    a(f'{L}_last:')
    a.wait(vm=0, lg=0)
    a('s_barrier')
    a(f's_cmp_lg_u32 s{sW}, 3'); a(f's_cbranch_scc1 {L}_end')
    a(f'v_mov_b32 v{T}, 64'); a(f's_lshl_b32 s{sA}, s{sH}, 7'); a(f's_add_u32 s{sA}, s{sA}, {F_M}')
    a(f'v_mov_b32 v{T+1}, 0'); a(f's_mov_b64 exec, 1')
    a(f'buffer_store_dword v{T}, v{T+1}, s[{S_FLG}:{S_FLG+3}], s{sA} offen sc1')
    a(f's_mov_b64 exec, -1')
    a.wait(vm=0)
    a(f'{L}_end:')

def chain_role(a, L, sL, sFast, wait_kv=True, stamps=False, opt=None):
    from common import spin_flag
    opt = dict(opt or {}); opt['wait_kv'] = wait_kv
    a(f's_mov_b32 s{sH}, s{sL}')
    a(f's_mov_b32 s58, s{sFast}')
    a(f's_load_dwordx2 s[60:61], s[0:1], {KA_WS}')
    a(f's_load_dwordx4 s[64:67], s[0:1], {KA_WQ}')
    a(f's_load_dwordx4 s[68:71], s[0:1], {KA_WV}')
    a(f's_load_dwordx2 s[72:73], s[0:1], {KA_MEM0}')
    a('v_lshrrev_b32 v1, 6, v0')
    a(f'v_readfirstlane_b32 s{sW}, v1')
    a.wait(lg=0)
    srd(a, S_PART, 60, 61, OFF_PART, R_PART*262144)
    srd(a, S_MEM, 60, 61, OFF_MEM, 3*8192)
    srd(a, S_KV, 60, 61, OFF_KV, 64*32*4*4096)
    srd(a, S_KM, 60, 61, OFF_KM, 64*32*4*2048)
    srd(a, S_FLG, 60, 61, OFF_FLAGS, 65536)
    lane_consts(a)
    a(f's_mov_b32 s{sBudget}, 400000')
    for r in range(4): a(f'v_mov_b32 v{M+r}, -1')
    for fast in (1, 0):
        ST = '' if fast else 'sc1'
        if fast: a(f's_cmp_eq_u32 s58, 0'); a(f's_cbranch_scc1 {L}_poison_slow')
        else: a(f'{L}_poison_slow:')
        for slot in range(R_PART):
            for i in range(2):
                a(f's_add_u32 s{sA}, s{sRst}, {slot*262144 + i*1024}')
                a(f'buffer_store_dwordx4 v[{M}:{M+3}], v{vL16}, s[{S_PART}:{S_PART+3}], s{sA} offen {ST}')
        a(f's_lshl_b32 s{sA}, s{sH}, 8')
        for slot in range(3):
            a(f'buffer_store_dword v{M}, v{vL4}, s[{S_MEM}:{S_MEM+3}], s{sA} offen {ST}')
            a(f's_add_u32 s{sA}, s{sA}, 8192')
        if fast: a(f's_branch {L}_poison_done')
    a(f'{L}_poison_done:')
    a._emit('s_waitcnt vmcnt(0)'); a.vm = []
    a('s_barrier')
    a(f's_cmp_lg_u32 s{sW}, 0'); a(f's_cbranch_scc1 {L}_noarr')
    a(f'v_mov_b32 v{T}, {F_CHAINRDY}'); a(f'v_mov_b32 v{T+1}, 1'); a('s_mov_b64 exec, 1')
    a(f'buffer_atomic_add v{T+1}, v{T}, s[{S_FLG}:{S_FLG+3}], 0 offen')
    a('s_mov_b64 exec, -1')
    a(f'{L}_noarr:')
    a._emit('s_waitcnt vmcnt(0)'); a.vm = []
    load_weights(a, 64, 66, 68, 70)
    a(f's_mov_b32 s{S_TMP}, s72'); a(f's_mov_b32 s{S_TMP+1}, s73'); a(f's_mov_b32 s{S_TMP+2}, 8192'); a(f's_mov_b32 s{S_TMP+3}, 0x20000')
    l, n, t1 = T, T+1, T+3
    a(f'v_and_b32 v{l}, 63, v0'); a(f'v_bfe_u32 v{n}, v{l}, 2, 2'); a(f'v_lshlrev_b32 v{n}, 1, v{n}')
    a(f'v_and_b32 v{t1}, 1, v{l}'); a(f'v_add_u32 v{n}, v{n}, v{t1}'); a(f'v_lshlrev_b32 v{n}, 10, v{n}')
    a(f'v_bfe_u32 v{t1}, v{l}, 1, 1'); a(f'v_lshl_add_u32 v{n}, v{t1}, 7, v{n}')
    a(f'v_bfe_u32 v{t1}, v{l}, 4, 2'); a(f'v_lshl_add_u32 v{n}, v{t1}, 3, v{n}')
    a(f's_lshl_b32 s{sA}, s{sW}, 8')
    for tt in range(2):
        for q, off in enumerate((0, 32, 4, 36)):
            a(f'buffer_load_dword v{X+4*tt+q}, v{n}, s[{S_TMP}:{S_TMP+3}], s{sA} offen offset:{64*tt + off}')
    a(f's_mov_b32 s{sB}, 0x05040100'); a(f's_mov_b32 s{sC}, 0x07060302')
    for tt in range(2):
        A_, B_, C_, D_ = X+4*tt, X+4*tt+1, X+4*tt+2, X+4*tt+3
        a(f'v_perm_b32 v{M+4*tt}, v{B_}, v{A_}, s{sB}'); a(f'v_perm_b32 v{M+4*tt+1}, v{B_}, v{A_}, s{sC}')
        a(f'v_perm_b32 v{M+4*tt+2}, v{D_}, v{C_}, s{sB}'); a(f'v_perm_b32 v{M+4*tt+3}, v{D_}, v{C_}, s{sC}')
    a(f'ds_write_b128 v{vGoff}, v[{M}:{M+3}] offset:{LDS_MEM}')
    a(f'ds_write_b128 v{vGoff}, v[{M+4}:{M+7}] offset:{LDS_MEM+1024}')
    if wait_kv:
        a(f's_mov_b32 s{sA}, {F_KV0}'); a(f's_mov_b32 s{sB}, 224')
        spin_flag(a, f'{L}_wkv', S_FLG, sA, sB, sBudget, T)
    a(f's_mov_b32 s{sA}, {F_CHAINRDY}'); a(f's_mov_b32 s{sB}, 32')
    spin_flag(a, f'{L}_wrdy', S_FLG, sA, sB, sBudget, T)
    a(f's_mov_b32 s{sStep}, 0')
    a(f's_lshl_b32 s{sFlag}, s{sH}, 7'); a(f's_add_u32 s{sFlag}, s{sFlag}, {F_M}')
    a(f's_mov_b32 s{sMemOff}, 8192')
    a(f's_lshl_b32 s{sMemRst}, s{sH}, 8'); a(f's_add_u32 s{sMemRst}, s{sMemRst}, 16384')
    a(f's_mov_b32 s{sPartOff}, 0'); a(f's_add_u32 s{sRstCur}, s{sRst}, {2*262144}')
    a(f's_lshl_b32 s{sA}, s{sH}, 2'); a(f's_add_u32 s{sA}, s{sA}, s{sW}')
    a(f's_lshl_b32 s{sKMoff}, s{sA}, 11')
    a(f's_lshl_b32 s{sA}, s{sA}, 12')
    for kt in range(2): a(f'buffer_load_dwordx4 {vr(Kx+4*kt,4)}, v{vL16}, s[{S_KV}:{S_KV+3}], s{sA} offen offset:{1024*kt}')
    for ft in range(2): a(f'buffer_load_dwordx4 {vr(Vx+4*ft,4)}, v{vL16}, s[{S_KV}:{S_KV+3}], s{sA} offen offset:{2048+1024*ft}')
    a(f's_mov_b32 s{sKV0}, s{sA}')
    a(f's_add_u32 s{sKVnext}, s{sA}, {32*4*4096}')
    a(f's_lshl_b32 s{sB}, s{sH}, 2'); a(f's_and_b32 s{sC}, s{sW}, 1'); a(f's_lshl_b32 s{sC}, s{sC}, 1'); a(f's_add_u32 s{sB}, s{sB}, s{sC}')
    a(f's_lshl_b32 s{sB}, s{sB}, 12'); a(f's_add_u32 s{sKVwarm}, s{sB}, {2*32*4*4096}')
    a(f's_cmp_ge_u32 s{sW}, 2'); a(f's_cselect_b32 s{sMaskW}, -1, 0'); a(f's_mov_b32 s{sMaskW+1}, s{sMaskW}')
    for z in zero_regs(aQ, 24): a(z)
    for x in stream_reads(('q', 0), 0) + stream_reads(('q', 1), 2): a(x)
    for r in range(4): a(f'v_mov_b32 v{T+4+r}, -1')
    if stamps is not None:
        for k in range(84, 96): a(f's_mov_b32 s{k}, 0')
        a('s_memrealtime s[92:93]')
        a('s_memtime s[82:83]')
    a.wait(vm=0, lg=0)
    a('s_barrier')
    a(f's_cmp_eq_u32 s58, 0'); a(f's_cbranch_scc1 {L}_slow_step')
    chain_loop(a, L + '_fast', True, stamps, opt)
    a(f's_branch {L}_exit')
    chain_loop(a, L + '_slow', False, stamps, opt)
    a(f'{L}_exit:')
```

```python
from asmlib import *
from layout import *

def header(names_grid):
    pass

def census(a, L, sL, sFast, sXcc, sT, nwg=256):
    t0, t1, t2 = sT, sT+1, sT+2
    a(f's_load_dwordx2 s[4:5], s[0:1], {KA_DBG}')
    a(f's_load_dwordx2 s[8:9], s[0:1], {KA_WS}')
    a(f's_getreg_b32 s{sXcc}, hwreg(HW_REG_XCC_ID, 0, 3)')
    a.wait(lg=0)
    a('s_mov_b32 s6, 256'); a('s_mov_b32 s7, 0x20000')
    a(f's_mov_b32 s10, 65536'); a('s_mov_b32 s11, 0x20000')
    a('v_lshrrev_b32 v1, 6, v0')
    a(f'v_readfirstlane_b32 s{t0}, v1')
    a(f's_cmp_lg_u32 s{t0}, 0'); a(f's_cbranch_scc1 {L}_cwait')
    a(f's_lshl_b32 s{t1}, s2, 8')
    a('v_lshlrev_b32 v2, 2, v0'); a('v_mov_b32 v3, 0')
    a(f'buffer_store_dword v3, v2, s[8:11], s{t1} offen sc1')
    a.wait(vm=0)
    a(f's_lshl_b32 s{t1}, s{sXcc}, 5')
    a(f'v_mov_b32 v4, s{t1}'); a('v_mov_b32 v5, 1')
    a('s_mov_b64 exec, 1')
    a('buffer_atomic_add v5, v4, s[4:7], 0 offen sc0')
    a('s_mov_b64 exec, -1')
    a('v_lshlrev_b32 v6, 5, v0')
    a(f's_mov_b32 s{t2}, 2000000')
    a.wait(vm=0)
    a(f'{L}_cpoll:')
    a('buffer_load_dword v7, v6, s[4:7], 0 offen sc1')
    a.wait(vm=0)
    a('v_mov_b32 v8, v7')
    for sh in (1, 2, 4):
        a(f'v_add_u32_dpp v8, v8, v8 row_shr:{sh} row_mask:0xf bank_mask:0xf bound_ctrl:0')
    a(f'v_readlane_b32 s{t1}, v8, 7')
    a(f's_cmp_ge_u32 s{t1}, {nwg}'); a(f's_cbranch_scc1 {L}_cdone')
    a(f's_sub_u32 s{t2}, s{t2}, 1'); a(f's_cmp_lg_u32 s{t2}, 0'); a(f's_cbranch_scc1 {L}_cpoll')
    a(f'{L}_cdone:')
    a(f'v_cmp_gt_u32 vcc, s{sXcc}, v0')
    a('v_cndmask_b32 v8, 0, v7, vcc')
    for sh in (1, 2, 4):
        a(f'v_add_u32_dpp v8, v8, v8 row_shr:{sh} row_mask:0xf bank_mask:0xf bound_ctrl:0')
    a(f'v_readlane_b32 s{t1}, v8, 7')
    a(f'v_readlane_b32 s{t2}, v7, 0')
    a(f'v_readlane_b32 s{sL}, v5, 0')
    a(f's_add_u32 s{sL}, s{sL}, s{t1}')
    a(f's_cmp_ge_u32 s{t2}, 32'); a(f's_cselect_b32 s{t2}, 1, 0')
    a(f's_lshl_b32 s{t2}, s{t2}, 16'); a(f's_or_b32 s{t1}, s{t2}, s{sL}')
    a(f'v_mov_b32 v8, s{t1}'); a(f'v_mov_b32 v9, {LDS_MISC}')
    a('ds_write_b32 v9, v8')
    a.wait(lg=0)
    a(f'{L}_cwait:')
    a('s_barrier')
    a(f'v_mov_b32 v9, {LDS_MISC}')
    a('ds_read_b32 v8, v9')
    a.wait(lg=0)
    a(f'v_readfirstlane_b32 s{t1}, v8')
    a(f's_and_b32 s{sL}, s{t1}, 0xffff'); a(f's_lshr_b32 s{sFast}, s{t1}, 16')

def spin_flag(a, L, srd, sOff, sVal, sBudget, vt, ge=True):
    a(f'v_mov_b32 v{vt}, 0')
    a(f'{L}:')
    a(f'buffer_load_dword v{vt+1}, v{vt}, s[{srd}:{srd+3}], s{sOff} offen sc1')
    a.wait(vm=0)
    a(f'v_readfirstlane_b32 s{sVal+1}, v{vt+1}')
    a(f's_cmp_ge_u32 s{sVal+1}, s{sVal}'); a(f's_cbranch_scc1 {L}_ok')
    a(f's_cmp_eq_u32 s{sBudget}, 0'); a(f's_cbranch_scc1 {L}_ok')
    a(f's_sub_u32 s{sBudget}, s{sBudget}, 1')
    a('s_sleep 2')
    a(f's_branch {L}')
    a(f'{L}_ok:')

def kd(name, vgpr=512, sgpr=100, accum=256):
    return f'''.amdhsa_kernel {name}
  .amdhsa_next_free_vgpr {vgpr}
  .amdhsa_next_free_sgpr {sgpr}
  .amdhsa_accum_offset {accum}
  .amdhsa_group_segment_fixed_size 0
  .amdhsa_kernarg_size 112
  .amdhsa_user_sgpr_count 2
  .amdhsa_user_sgpr_kernarg_segment_ptr 1
  .amdhsa_system_sgpr_workgroup_id_x 1
.end_amdhsa_kernel
'''
```

```python
OFF_FLAGS = 0x0000000
OFF_PART  = 0x0100000
R_PART    = 3
OFF_MEM   = 0x0200000
OFF_XN    = 0x0400000
OFF_KV    = 0x0800000
OFF_KM    = 0x2800000
OFF_ACT   = 0x3800000
OFF_O     = 0x4000000
WS_END    = 0x5000000
F_CHAINRDY = 0
F_LN       = 128
F_KV       = 256
F_F1       = 384
F_KV0      = 512
F_M        = 1024
F_O        = 8192
KA_X, KA_MEM0, KA_WQ, KA_WK, KA_WV, KA_WO = 0, 8, 16, 24, 32, 40
KA_W1, KA_B1, KA_W2, KA_OUT, KA_DBG, KA_WS = 64, 72, 80, 88, 96, 104
LDS_MEM = 0
LDS_SX  = 8192
LDS_S0  = 12288
LDS_OB  = 14336
LDS_MISC = 0
LDS_W   = 16384
LDS_WREG = 36864
OFF_STAMP = 0x5000000
```

```python
from asmlib import *
from layout import *
from common import spin_flag

S_W, S_XN, S_KV, S_A, S_B = 4, 8, 12, 16, 20
sWid, sW = 24, 25
sSeg, sBuf, sH, sI = 26, 27, 28, 29
sStg = 30
sCol = 31
sT0, sT1 = 32, 38
sBudget = 33
sA, sB, sC, sD = 34, 35, 36, 37
S_FLG = 40
sWs = 44
sPtr = 46
sNext = 48
STAMP = False
DEPTH = 8
W_XN = 0
W_STG = 0
W_EX = 131072
vL16, vTr, vL, vN, vG, vRow = 1, 2, 3, 4, 5, 6
vZero = 7

def srd(a, s, lo, hi, off, size):
    if off: a(f's_add_u32 s{s}, s{lo}, {off}'); a(f's_addc_u32 s{s+1}, s{hi}, 0')
    else: a(f's_mov_b32 s{s}, s{lo}'); a(f's_mov_b32 s{s+1}, s{hi}')
    a(f's_mov_b32 s{s+2}, {size}'); a(f's_mov_b32 s{s+3}, 0x20000')

def srd_arg(a, s, karg, size):
    a(f's_load_dwordx2 s[{sPtr}:{sPtr+1}], s[0:1], {karg}')
    a.wait(lg=0)
    srd(a, s, sPtr, sPtr+1, 0, size)

def w_prologue(a, sL):
    a(f's_sub_u32 s{sWid}, s{sL}, 32')
    a(f's_load_dwordx2 s[{sWs}:{sWs+1}], s[0:1], {KA_WS}')
    a('v_lshrrev_b32 v1, 6, v0')
    a(f'v_readfirstlane_b32 s{sW}, v1')
    a.wait(lg=0)
    srd(a, S_XN, sWs, sWs+1, OFF_XN, 64*32768)
    srd(a, S_KV, sWs, sWs+1, OFF_KV, 64*32*4*4096)
    srd(a, S_FLG, sWs, sWs+1, OFF_FLAGS, 65536)
    a(f'v_and_b32 v{vL}, 63, v0')
    a(f'v_and_b32 v{vN}, 15, v{vL}'); a(f'v_lshrrev_b32 v{vG}, 4, v{vL}')
    a(f'v_lshlrev_b32 v{vL16}, 4, v{vL}')
    a(f'v_mov_b32 v{vZero}, 0')
    a(f's_lshl_b32 s{sStg}, s{sW}, 15'); a(f's_add_u32 s{sStg}, s{sStg}, {W_STG}')
    a(f'v_bfe_u32 v8, v{vL}, 2, 2'); a(f'v_lshl_add_u32 v8, v{vG}, 2, v8')
    a(f'v_and_b32 v9, 3, v{vL}'); a(f'v_lshlrev_b32 v9, 3, v9')
    a(f'v_lshl_add_u32 v{vTr}, v8, 6, v9')
    a(f'v_add_u32 v{vTr}, s{sStg}, v{vTr}')
    a(f's_mov_b32 s{sBudget}, 400000')

def set_row(a, stride):
    a(f'v_lshrrev_b32 v8, 2, v{vL}')
    a(f's_mov_b32 s{sA}, {stride}')
    a(f'v_mul_lo_u32 v8, v8, s{sA}')
    a(f'v_and_b32 v9, 3, v{vL}')
    a(f'v_lshl_add_u32 v{vRow}, v9, 4, v8')

def load_units(a, units, stride, depth=4):
    n = len(units)
    def issue(i):
        srd_, sb, imm, dst = units[i]; slot = i % depth
        for q in range(4):
            a(f's_add_u32 s{sA}, s{sb}, {imm + 16*q*stride}')
            a(f's_add_u32 m0, s{sStg}, {slot*4096 + q*1024}')
            a(f'buffer_load_dwordx4 v{vRow}, s[{srd_}:{srd_+3}], s{sA} offen lds')
    def consume(i):
        srd_, sb, imm, (c, b) = units[i]; slot = i % depth
        for kk in range(2):
            for ft in range(2):
                for half in range(2):
                    r = b + 8*kk + 4*ft + 2*half
                    a(f'ds_read_b64_tr_b16 {c}[{r}:{r+1}], v{vTr} offset:{slot*4096 + kk*2048 + half*1024 + ft*32}')
        a.wait(lg=0)
    a._emit('s_waitcnt vmcnt(0) lgkmcnt(0)'); a.vm = []; a.lg = []
    a('s_barrier')
    for i in range(min(depth, n)): issue(i)
    for i in range(n):
        later = min(n, i + depth) - (i + 1)
        a.wait(vm=4*later)
        consume(i)
        if i + depth < n: issue(i + depth)

def opnd(c, base, kk, ft):
    r = base + 16*(kk >> 1) + 8*(kk & 1) + 4*ft
    return f'{c}[{r}:{r+3}]'

def xn_dma(a, sSegReg, sBufReg):
    a(f's_lshl_b32 s{sA}, s{sSegReg}, 15'); a(f's_lshl_b32 s{sB}, s{sW}, 13'); a(f's_add_u32 s{sA}, s{sA}, s{sB}')
    a(f's_add_u32 s{sB}, s{sB}, s{sBufReg}')
    for hh in range(2):
        a(f's_mov_b32 m0, s{sB}') if hh == 0 else a(f's_add_u32 m0, s{sB}, 4096')
        if hh == 1: a(f's_add_u32 s{sA}, s{sA}, 4096')
        else: a('s_nop 0')
        for i in range(4):
            a(f'buffer_load_dwordx4 v{vL16}, s[{S_XN}:{S_XN+3}], s{sA} offen offset:{1024*i} sc1 lds')

def arrive(a, L, off_imm=None, sOff=None):
    a._emit('s_waitcnt vmcnt(0)'); a.vm = []
    a('s_barrier')
    a(f's_cmp_lg_u32 s{sW}, 0'); a(f's_cbranch_scc1 {L}_noarr')
    a('v_mov_b32 v8, 1')
    if sOff is None: a(f's_mov_b32 s{sA}, {off_imm}'); sOff = sA
    a('s_mov_b64 exec, 1')
    a(f'buffer_atomic_add v8, v{vZero}, s[{S_FLG}:{S_FLG+3}], s{sOff} offen')
    a('s_mov_b64 exec, -1')
    a(f'{L}_noarr:')
    a.vm = []

def allreduce_g(a, op, r, t):
    a(f'v_mov_b32 v{t}, v{r}'); a(f'v_permlane16_swap_b32 v{t}, v{r}'); a(f'{op} v{r}, v{r}, v{t}')
    a(f'v_mov_b32 v{t}, v{r}'); a(f'v_permlane32_swap_b32 v{t}, v{r}'); a(f'{op} v{r}, v{r}, v{t}')

def phase_ln(a, L):
    a(f's_cmp_ge_u32 s{sWid}, 128'); a(f's_cbranch_scc1 {L}_done')
    srd_arg(a, S_A, KA_X, 2048*1024)
    RAW, F = 16, 32
    a(f'v_lshlrev_b32 v8, 10, v{vN}'); a(f'v_lshl_add_u32 v8, v{vG}, 3, v8')
    a(f's_lshl_b32 s{sA}, s{sWid}, 14'); a(f's_lshl_b32 s{sB}, s{sW}, 8'); a(f's_add_u32 s{sA}, s{sA}, s{sB}')
    for kk in range(4):
        for half in range(2):
            r = RAW + 4*kk + 2*half
            a(f'buffer_load_dwordx2 v[{r}:{r+1}], v8, s[{S_A}:{S_A+3}], s{sA} offen offset:{64*kk + 32*half}')
    for i in range(16):
        a(f'v_lshlrev_b32 v{F+2*i}, 16, v{RAW+i}'); a(f'v_and_b32 v{F+2*i+1}, 0xffff0000, v{RAW+i}')
    def tree(dst, srcs, op3=None):
        a(f'v_add_f32 v{dst}, v{srcs[0]}, v{srcs[1]}')
        for x in srcs[2:]: a(f'v_add_f32 v{dst}, v{dst}, v{x}')
    for c in range(4): tree(10+c, [F+8*c+i for i in range(8)])
    a('v_add_f32 v10, v10, v11'); a('v_add_f32 v12, v12, v13'); a('v_add_f32 v10, v10, v12')
    allreduce_g(a, 'v_add_f32', 10, 11)
    a(f's_lshl_b32 s{sB}, s{sW}, 8'); a(f's_add_u32 s{sB}, s{sB}, {W_EX}')
    a(f'v_lshlrev_b32 v12, 2, v{vL}'); a(f'v_add_u32 v13, s{sB}, v12'); a(f'v_add_u32 v12, {W_EX}, v12')
    a('ds_write_b32 v13, v10'); a.wait(lg=0); a('s_barrier')
    for w in range(4): a(f'ds_read_b32 v{64+w}, v12 offset:{256*w}')
    a('v_add_f32 v64, v64, v65'); a('v_add_f32 v66, v66, v67'); a('v_add_f32 v10, v64, v66')
    a('v_mul_f32 v10, 0x3b000000, v10')
    for i in range(32): a(f'v_sub_f32 v{F+i}, v{F+i}, v10')
    for c in range(4):
        a(f'v_mul_f32 v{64+c}, v{F+8*c}, v{F+8*c}')
        for i in range(1, 8): a(f'v_fmac_f32 v{64+c}, v{F+8*c+i}, v{F+8*c+i}')
    a('v_add_f32 v64, v64, v65'); a('v_add_f32 v66, v66, v67'); a('v_add_f32 v10, v64, v66')
    allreduce_g(a, 'v_add_f32', 10, 11)
    a('ds_write_b32 v13, v10 offset:1024'); a.wait(lg=0); a('s_barrier')
    for w in range(4): a(f'ds_read_b32 v{64+w}, v12 offset:{1024+256*w}')
    a('v_add_f32 v64, v64, v65'); a('v_add_f32 v66, v66, v67'); a('v_add_f32 v10, v64, v66')
    a('v_mov_b32 v11, 0x3727c5ac')
    a('v_fmac_f32 v11, 0x3b000000, v10')
    a('v_rsq_f32 v11, v11')
    for i in range(32): a(f'v_mul_f32 v{F+i}, v{F+i}, v11')
    for kk in range(4):
        for d in range(4): a(f'v_cvt_pk_bf16_f32 v{RAW+4*kk+d}, v{F+8*kk+2*d}, v{F+8*kk+2*d+1}')
    a(f's_lshl_b32 s{sA}, s{sWid}, 14'); a(f's_lshl_b32 s{sB}, s{sW}, 12'); a(f's_add_u32 s{sA}, s{sA}, s{sB}')
    for kk in range(4):
        a(f'buffer_store_dwordx4 v[{RAW+4*kk}:{RAW+4*kk+3}], v{vL16}, s[{S_XN}:{S_XN+3}], s{sA} offen offset:{1024*kk} sc1')
    arrive(a, L + '_ln', F_LN)
    a(f'{L}_done:')

FR = 16
ACC = 40
def frag_read(kk, buf_reg):
    base = FR + 8*(kk % 3)
    return [f'ds_read_b128 v[{base+4*t}:{base+4*t+3}], v{buf_reg} offset:{t*16384 + kk*1024}' for t in range(2)]
def frag(kk, t):
    base = FR + 8*(kk % 3) + 4*t
    return f'v[{base}:{base+3}]'

def seg_gemm(a, mf):
    for x in frag_read(0, 8) + frag_read(1, 8): a(x)
    for kk in range(16):
        m = mf(kk)
        a(m[0])
        if kk + 2 < 16:
            rd = frag_read(kk + 2, 8)
            a(rd[0]); a(m[1]); a(rd[1])
            for x in m[2:]: a(x)
        else:
            for x in m[1:]: a(x)

def seg_loop_head(a, L, sFirst, step):
    a(f's_mov_b32 s{sBuf}, {W_XN}')
    a('s_barrier')
    xn_dma(a, sSeg, sBuf)
    a._emit('s_waitcnt vmcnt(0)'); a.vm = []
    a('s_barrier')
    a(f'{L}_loop:')
    a.assume_drained()
    a(f's_add_u32 s{sNext}, s{sSeg}, {step}')
    a(f's_xor_b32 s{sT0}, s{sBuf}, 32768')
    a(f's_cmp_ge_u32 s{sNext}, 64'); a(f's_cbranch_scc1 {L}_nopf')
    xn_dma(a, sNext, sT0)
    a(f'{L}_nopf:')
    a.vm = []
    a(f'v_add_u32 v8, s{sBuf}, v{vL16}')

def seg_loop_tail(a, L, nstores):
    a._emit(f's_waitcnt vmcnt({nstores})'); a.vm = []
    a('s_barrier')
    a(f's_mov_b32 s{sSeg}, s{sNext}'); a(f's_mov_b32 s{sBuf}, s{sT0}')
    a(f's_cmp_lt_u32 s{sSeg}, 64'); a(f's_cbranch_scc1 {L}_loop')

def phase_kv(a, L):
    a(f's_mul_i32 s{sH}, s{sWid}, 9363'); a(f's_lshr_b32 s{sH}, s{sH}, 16')
    a(f's_mul_i32 s{sA}, s{sH}, 7'); a(f's_sub_u32 s{sI}, s{sWid}, s{sA}')
    set_row(a, 8192)
    a(f's_lshl_b32 s{sCol}, s{sH}, 8'); a(f's_lshl_b32 s{sA}, s{sW}, 6'); a(f's_add_u32 s{sCol}, s{sCol}, s{sA}')
    srd_arg(a, S_W, KA_WK, 0x400000)
    srd_arg(a, S_B, KA_WV, 0x400000)
    units = [(S_W, sCol, 64*u*8192, ('a', 16*u)) for u in range(8)] + [(S_B, sCol, 64*u*8192, ('a', 128 + 16*u)) for u in range(8)]
    load_units(a, units, 8192, DEPTH)
    if STAMP: a('s_memrealtime s[88:89]')
    a(f's_mov_b32 s{sA}, {F_LN}'); a(f's_mov_b32 s{sB}, 128')
    spin_flag(a, f'{L}_wln', S_FLG, sA, sB, sBudget, 8)
    a(f's_mov_b32 s{sSeg}, s{sI}')
    seg_loop_head(a, L, sI, 7)
    def mf(kk):
        out = []
        for ft in range(2):
            for t in range(2):
                d = ACC + 8*t + 4*ft
                out.append(f'v_mfma_f32_16x16x32_bf16 v[{d}:{d+3}], {opnd("a", 0, kk, ft)}, {frag(kk, t)}, {"0" if kk == 0 else f"v[{d}:{d+3}]"}')
        for ft in range(2):
            for t in range(2):
                d = ACC + 16 + 8*ft + 4*t
                out.append(f'v_mfma_f32_16x16x32_bf16 v[{d}:{d+3}], {frag(kk, t)}, {opnd("a", 128, kk, ft)}, {"0" if kk == 0 else f"v[{d}:{d+3}]"}')
        return out
    seg_gemm(a, mf)
    a(f's_lshl_b32 s{sA}, s{sSeg}, 5'); a(f's_add_u32 s{sA}, s{sA}, s{sH}'); a(f's_lshl_b32 s{sA}, s{sA}, 2')
    a(f's_add_u32 s{sA}, s{sA}, s{sW}'); a(f's_lshl_b32 s{sA}, s{sA}, 12')
    for q in range(4):
        b = ACC + 8*q
        for d in range(4): a(f'v_cvt_pk_bf16_f32 v{72+4*q+d}, v{b+2*d}, v{b+2*d+1}')
        a(f'buffer_store_dwordx4 v[{72+4*q}:{72+4*q+3}], v{vL16}, s[{S_KV}:{S_KV+3}], s{sA} offen offset:{1024*q} sc1')
    a(f's_add_u32 s{sA}, s{sI}, 7'); a(f's_cmp_lg_u32 s{sSeg}, s{sA}'); a(f's_cbranch_scc1 {L}_noearly')
    arrive(a, L + '_kv0', F_KV0)
    a(f'{L}_noearly:')
    seg_loop_tail(a, L, 4)
    arrive(a, L + '_kv', F_KV)

def phase_f1(a, L):
    a(f's_lshr_b32 s{sH}, s{sWid}, 4'); a(f's_and_b32 s{sI}, s{sWid}, 15')
    set_row(a, 3584)
    a(f's_lshl_b32 s{sCol}, s{sH}, 8'); a(f's_lshl_b32 s{sA}, s{sW}, 6'); a(f's_add_u32 s{sCol}, s{sCol}, s{sA}')
    srd_arg(a, S_W, KA_W1, 512*3584)
    srd_arg(a, S_B, KA_B1, 3584)
    srd(a, S_A, sWs, sWs+1, OFF_ACT, 64*2*56*1024)
    a(f'v_lshlrev_b32 v8, 3, v{vG}')
    for ft in range(2): a(f'buffer_load_dwordx2 v[{80+2*ft}:{81+2*ft}], v8, s[{S_B}:{S_B+3}], s{sCol} offen offset:{32*ft}')
    for ft in range(2):
        for d in range(2):
            a(f'v_lshlrev_b32 v{72+4*ft+2*d}, 16, v{80+2*ft+d}'); a(f'v_and_b32 v{72+4*ft+2*d+1}, 0xffff0000, v{80+2*ft+d}')
    load_units(a, [(S_W, sCol, 64*u*3584, ('a', 16*u)) for u in range(8)], 3584, DEPTH)
    if STAMP: a('s_memrealtime s[78:79]')
    a(f's_mov_b32 s{sSeg}, s{sI}')
    seg_loop_head(a, L, sI, 16)
    def mf(kk):
        out = []
        for t in range(2):
            for ft in range(2):
                d = ACC + 8*t + 4*ft
                out.append(f'v_mfma_f32_16x16x32_bf16 v[{d}:{d+3}], {opnd("a", 0, kk, ft)}, {frag(kk, t)}, {"0" if kk == 0 else f"v[{d}:{d+3}]"}')
        return out
    seg_gemm(a, mf)
    a(f's_mov_b32 s{sB}, 0x3fb8aa3b')
    a(f's_mov_b32 s{sC}, 0x41a00000')
    for t in range(2):
        for i in range(8):
            h = ACC + 8*t + i; e = 84 + i
            a(f'v_add_f32 v{h}, v{h}, v{72+i}')
        for i in range(8):
            h = ACC + 8*t + i; e = 84 + i
            a(f'v_min_f32 v{e}, s{sC}, v{h}'); a(f'v_mul_f32 v{e}, s{sB}, v{e}')
        for i in range(8): a(f'v_exp_f32 v{84+i}, v{84+i}')
        for i in range(8):
            e, n_ = 84 + i, 92 + i
            a(f'v_add_f32 v{n_}, 2.0, v{e}'); a(f'v_mul_f32 v{e}, v{e}, v{n_}')
        for i in range(8): a(f'v_add_f32 v{92+i}, 2.0, v{84+i}')
        for i in range(8): a(f'v_rcp_f32 v{92+i}, v{92+i}')
        for i in range(8):
            h = ACC + 8*t + i
            a(f'v_mul_f32 v{84+i}, v{84+i}, v{92+i}'); a(f'v_mul_f32 v{h}, v{h}, v{84+i}')
        for d in range(4): a(f'v_cvt_pk_bf16_f32 v{100+4*t+d}, v{ACC+8*t+2*d}, v{ACC+8*t+2*d+1}')
    a(f's_mul_i32 s{sA}, s{sSeg}, {2*56*1024}'); a(f's_lshl_b32 s{sB}, s{sH}, 2'); a(f's_add_u32 s{sB}, s{sB}, s{sW}')
    a(f's_lshl_b32 s{sB}, s{sB}, 10'); a(f's_add_u32 s{sA}, s{sA}, s{sB}')
    a(f'buffer_store_dwordx4 v[100:103], v{vL16}, s[{S_A}:{S_A+3}], s{sA} offen sc1')
    a(f's_add_u32 s{sA}, s{sA}, {56*1024}')
    a(f'buffer_store_dwordx4 v[104:107], v{vL16}, s[{S_A}:{S_A+3}], s{sA} offen sc1')
    seg_loop_tail(a, L, 2)
    arrive(a, L + '_f1', F_F1)

EX_Q = W_EX
EX_K = W_EX + 8192
def phase_attn(a, L):
    QW, QA, KX, T1, T0, KM, VX, VA, ONES, PX, PB, DEN, O, TM = 56, 64, 96, 128, 140, 148, 164, 172, 176, 180, 188, 192, 200, 216
    S_KM, S_O = S_A, S_B
    sM = 50
    sCexp, sKV, sKMo, sFM = 58, 59, 60, 61
    a(f's_and_b32 s{sH}, s{sWid}, 31'); a(f's_lshr_b32 s{sI}, s{sWid}, 5')
    set_row(a, 8192)
    a(f's_lshl_b32 s{sCol}, s{sH}, 8'); a(f's_lshl_b32 s{sA}, s{sW}, 6'); a(f's_add_u32 s{sCol}, s{sCol}, s{sA}')
    srd_arg(a, S_W, KA_WQ, 0x400000)
    load_units(a, [(S_W, sCol, 64*u*8192, ('a', 16*u)) for u in range(8)], 8192, DEPTH)
    srd(a, S_KM, sWs, sWs+1, OFF_KM, 64*32*4*2048)
    srd(a, S_O, sWs, sWs+1, OFF_O, 64*2*128*1024)
    for r in range(4):
        a(f'v_lshl_add_u32 v8, v{vG}, 2, {r}')
        a(f'v_cmp_le_u32 s[{sM+2*r}:{sM+2*r+1}], v8, v{vN}')
    a(f's_mov_b32 s{sCexp}, 0x3e0293ee')
    for r in range(4): a(f'v_mov_b32 v{ONES+r}, 0x3f803f80')
    for r in range(4): a(f'v_mov_b32 v{VA+r}, 0'); a(f'v_mov_b32 v{PB+r}, 0')
    a(f'v_mov_b32 v{PX+2}, 0'); a(f'v_mov_b32 v{PX+3}, 0')
    a(f'v_lshlrev_b32 v9, 2, v{vL}')
    a(f's_lshl_b32 s{sFM}, s{sH}, 7'); a(f's_add_u32 s{sFM}, s{sFM}, {F_M}')
    a(f's_mov_b32 s{sA}, {F_KV}'); a(f's_mov_b32 s{sB}, 224')
    spin_flag(a, f'{L}_wkv', S_FLG, sA, sB, sBudget, 10)
    a(f's_mov_b32 s{sSeg}, s{sI}')
    seg_loop_head(a, L, sI, 2)
    a(f's_lshl_b32 s{sKV}, s{sSeg}, 5'); a(f's_add_u32 s{sKV}, s{sKV}, s{sH}'); a(f's_lshl_b32 s{sKV}, s{sKV}, 2')
    a(f's_add_u32 s{sKV}, s{sKV}, s{sW}'); a(f's_lshl_b32 s{sKMo}, s{sKV}, 11'); a(f's_lshl_b32 s{sKV}, s{sKV}, 12')
    a(f's_lshl_b32 s{sA}, s{sW}, 11'); a(f's_add_u32 m0, s{sA}, {EX_K}'); a('s_nop 0')
    for kt in range(2): a(f'buffer_load_dwordx4 v{vL16}, s[{S_KV}:{S_KV+3}], s{sKV} offen offset:{1024*kt} sc1 lds')
    for ft in range(2): a(f'buffer_load_dwordx4 v[{VX+4*ft}:{VX+4*ft+3}], v{vL16}, s[{S_KV}:{S_KV+3}], s{sKV} offen offset:{2048+1024*ft} sc1')
    def mf(kk):
        out = []
        for t in range(2):
            for ft in range(2):
                d = ACC + 8*t + 4*ft
                out.append(f'v_mfma_f32_16x16x32_bf16 v[{d}:{d+3}], {opnd("a", 0, kk, ft)}, {frag(kk, t)}, {"0" if kk == 0 else f"v[{d}:{d+3}]"}')
        return out
    seg_gemm(a, mf)
    for t in range(2):
        for d in range(4): a(f'v_cvt_pk_bf16_f32 v{QW+4*t+d}, v{ACC+8*t+2*d}, v{ACC+8*t+2*d+1}')
    a(f's_lshl_b32 s{sA}, s{sW}, 10'); a(f's_add_u32 s{sA}, s{sA}, {EX_Q}'); a(f'v_add_u32 v10, s{sA}, v{vL16}')
    for t in range(2): a(f'ds_write_b128 v10, v[{QW+4*t}:{QW+4*t+3}] offset:{4096*t}')
    a._emit('s_waitcnt vmcnt(0) lgkmcnt(0)'); a.vm = []; a.lg = []
    a('s_barrier')
    a(f'v_add_u32 v10, {W_EX}, v{vL16}')
    for t in range(2):
        for w in range(4): a(f'ds_read_b128 v[{QA+16*t+4*w}:{QA+16*t+4*w+3}], v10 offset:{4096*t + 1024*w}')
    for w in range(4):
        for kt in range(2): a(f'ds_read_b128 v[{KX+8*w+4*kt}:{KX+8*w+4*kt+3}], v10 offset:{8192 + 2048*w + 1024*kt}')
    tiles = [(0, 0, T1), (1, 0, T1+4), (1, 1, T1+8)]
    for w in range(4):
        for t, kt, d in tiles:
            a(f'v_mfma_f32_16x16x32_bf16 v[{d}:{d+3}], v[{KX+8*w+4*kt}:{KX+8*w+4*kt+3}], v[{QA+16*t+4*w}:{QA+16*t+4*w+3}], {"0" if w == 0 else f"v[{d}:{d+3}]"}')
    a('v_mov_b32 v10, 0xff800000')
    for d in (T1, T1+8):
        for r in range(4): a(f'v_cndmask_b32 v{d+r}, v10, v{d+r}, s[{sM+2*r}:{sM+2*r+1}]')
    a(f's_add_u32 s{sA}, s{sSeg}, 1'); a(f's_mov_b32 s{sB}, s{sA}'); a(f's_mov_b32 s{sA}, s{sFM}')
    spin_flag(a, f'{L}_wm', S_FLG, sA, sB, sBudget, 10)
    a(f's_lshl_b32 s{sA}, s{sW}, 11'); a(f's_sub_u32 s{sA}, s{sKMo}, s{sA}')
    for w in range(4):
        a(f'buffer_load_dwordx4 v[{KM+4*w}:{KM+4*w+3}], v{vL16}, s[{S_KM}:{S_KM+3}], s{sA} offen sc1')
        if w < 3: a(f's_add_u32 s{sA}, s{sA}, 2048')
    for ft in range(2): a(f'buffer_load_dword v{VA+2*ft}, v9, s[{S_KM}:{S_KM+3}], s{sKMo} offen offset:{1024+256*ft} sc1')
    for w in range(4):
        for t in range(2):
            d = T0 + 4*t
            a(f'v_mfma_f32_16x16x32_bf16 v[{d}:{d+3}], v[{KM+4*w}:{KM+4*w+3}], v[{QA+16*t+4*w}:{QA+16*t+4*w+3}], {"0" if w == 0 else f"v[{d}:{d+3}]"}')
    for t in range(2):
        vals = [T0+4*t, T0+4*t+1] + [T1+4*t+r for r in range(4)] + ([T1+8+r for r in range(4)] if t else [])
        mx, tt = TM, TM+1
        a(f'v_max3_f32 v{mx}, v{vals[0]}, v{vals[1]}, v{vals[2]}')
        rest = vals[3:]
        while len(rest) >= 2: a(f'v_max3_f32 v{mx}, v{mx}, v{rest[0]}, v{rest[1]}'); rest = rest[2:]
        if rest: a(f'v_max_f32 v{mx}, v{mx}, v{rest[0]}')
        allreduce_g(a, 'v_max_f32', mx, tt)
        a(f'v_mul_f32 v{mx}, s{sCexp}, v{mx}')
        for v in vals: a(f'v_fma_f32 v{v}, v{v}, s{sCexp}, -v{mx}')
        for v in vals: a(f'v_exp_f32 v{v}, v{v}')
        a(f'v_cvt_pk_bf16_f32 v{PB+2*t}, v{vals[0]}, v{vals[1]}')
        for q in range(2 if t == 0 else 4):
            a(f'v_cvt_pk_bf16_f32 v{PX+4*t+q}, v{vals[2+2*q]}, v{vals[3+2*q]}')
    for t in range(2):
        pb = f'v[{PB+2*t}:{PB+2*t+1}]'; px = f'v[{PX+4*t}:{PX+4*t+3}]'
        dn = f'v[{DEN+4*t}:{DEN+4*t+3}]'
        a(f'v_mfma_f32_16x16x16_bf16 {dn}, v[{ONES}:{ONES+1}], {pb}, 0')
        for ft in range(2):
            o = O + 8*t + 4*ft
            a(f'v_mfma_f32_16x16x16_bf16 v[{o}:{o+3}], v[{VA+2*ft}:{VA+2*ft+1}], {pb}, 0')
        a(f'v_mfma_f32_16x16x32_bf16 {dn}, v[{ONES}:{ONES+3}], {px}, {dn}')
        for ft in range(2):
            o = O + 8*t + 4*ft
            a(f'v_mfma_f32_16x16x32_bf16 v[{o}:{o+3}], v[{VX+4*ft}:{VX+4*ft+3}], {px}, v[{o}:{o+3}]')
    a(f's_lshl_b32 s{sA}, s{sSeg}, 18'); a(f's_lshl_b32 s{sB}, s{sH}, 2'); a(f's_add_u32 s{sB}, s{sB}, s{sW}')
    a(f's_lshl_b32 s{sB}, s{sB}, 10'); a(f's_add_u32 s{sA}, s{sA}, s{sB}')
    for t in range(2):
        a(f'v_rcp_f32 v{TM}, v{DEN+4*t}')
        for i in range(8): a(f'v_mul_f32 v{O+8*t+i}, v{O+8*t+i}, v{TM}')
        for d in range(4): a(f'v_cvt_pk_bf16_f32 v{QW+4*t+d}, v{O+8*t+2*d}, v{O+8*t+2*d+1}')
        a(f'buffer_store_dwordx4 v[{QW+4*t}:{QW+4*t+3}], v{vL16}, s[{S_O}:{S_O+3}], s{sA} offen sc1')
        if t == 0: a(f's_add_u32 s{sA}, s{sA}, {128*1024}')
    a(f's_lshl_b32 s{sC}, s{sSeg}, 7'); a(f's_add_u32 s{sC}, s{sC}, {F_O}')
    arrive(a, L + '_o', None, sC)
    seg_loop_tail(a, L, 0)

def phase_final(a, L):
    S_X, S_OUT, S_ACT, S_O = S_W, S_A, S_B, S_KV
    NB, RING, AC = 16, 16, 80
    sG, sCs, sBase = sH, sI, 50
    a(f's_sub_u32 s{sA}, s{sWid}, 64'); a(f's_lshr_b32 s{sG}, s{sA}, 4'); a(f's_and_b32 s{sCs}, s{sA}, 15')
    set_row(a, 1024)
    srd_arg(a, S_W, KA_WO, 0x400000)
    srd_arg(a, S_B, KA_W2, 1792*1024)
    a(f's_lshl_b32 s{sCol}, s{sCs}, 6'); a(f's_lshl_b32 s{sA}, s{sW}, 20'); a(f's_add_u32 s{sCol}, s{sCol}, s{sA}')
    a(f's_lshl_b32 s{sT1}, s{sCs}, 6'); a(f's_mul_i32 s{sA}, s{sW}, {448*1024}'); a(f's_add_u32 s{sT1}, s{sT1}, s{sA}')
    units = [(S_W, sCol, 64*u*1024, ('a', 16*u)) for u in range(16)] + [(S_B, sT1, 64*u*1024, ('v', 144 + 16*u)) for u in range(7)]
    load_units(a, units, 1024, DEPTH)
    srd_arg(a, S_X, KA_X, 2048*1024)
    srd_arg(a, S_OUT, KA_OUT, 2048*1024)
    srd(a, S_ACT, sWs, sWs+1, OFF_ACT, 64*2*56*1024)
    srd(a, S_O, sWs, sWs+1, OFF_O, 64*2*128*1024)
    a(f'v_lshlrev_b32 v9, 10, v{vN}'); a(f'v_lshl_add_u32 v9, v{vG}, 3, v9')
    a(f's_lshl_b32 s{sA}, s{sCs}, 6'); a(f's_and_b32 s{sB}, s{sW}, 1'); a(f's_lshl_b32 s{sB}, s{sB}, 5'); a(f's_add_u32 s{sA}, s{sA}, s{sB}')
    a(f's_lshr_b32 s{sB}, s{sW}, 1'); a(f's_lshl_b32 s{sB}, s{sB}, 14'); a(f's_add_u32 s{sA}, s{sA}, s{sB}')
    a(f'v_add_u32 v9, s{sA}, v9')
    a(f's_lshl_b32 s{sA}, s{sW}, 12'); a(f's_add_u32 s{sA}, s{sA}, {W_EX}'); a(f'v_add_u32 v10, s{sA}, v{vL16}')
    a(f's_lshl_b32 s{sA}, s{sW}, 10'); a(f's_add_u32 s{sA}, s{sA}, {W_EX}'); a(f'v_add_u32 v11, s{sA}, v{vL16}')
    a(f's_mov_b32 s{sA}, {F_F1}'); a(f's_mov_b32 s{sB}, 224')
    spin_flag(a, f'{L}_wf1', S_FLG, sA, sB, sBudget, 12)
    a(f's_mov_b32 s{sSeg}, s{sG}')
    a(f'{L}_loop:')
    a.assume_drained()
    def stream(srd_, nper, tstride, wbase_cls, wbase, first):
        jobs = [(t, j) for j in range(nper) for t in range(2)]
        def issue(i):
            t, j = jobs[i]; r = RING + 4*(i % NB)
            off = t*tstride + j*1024
            a(f's_add_u32 s{sA}, s{sBase}, {off & ~4095}')
            a(f'buffer_load_dwordx4 v[{r}:{r+3}], v{vL16}, s[{srd_}:{srd_+3}], s{sA} offen offset:{off & 4095} sc1')
        for i in range(min(NB, len(jobs))): issue(i)
        for i, (t, j) in enumerate(jobs):
            r = RING + 4*(i % NB)
            for ct in range(2):
                d = AC + 4*(2*t + ct)
                c = '0' if (first and j == 0) else f'v[{d}:{d+3}]'
                a(f'v_mfma_f32_16x16x32_bf16 v[{d}:{d+3}], {opnd(wbase_cls, wbase, j, ct)}, v[{r}:{r+3}], {c}')
            if i + NB < len(jobs): issue(i + NB)
    a(f's_lshl_b32 s{sT0}, s{sSeg}, 15')
    a(f'buffer_load_dwordx2 v[12:13], v9, s[{S_X}:{S_X+3}], s{sT0} offen')
    a(f's_mul_i32 s{sBase}, s{sSeg}, {2*56*1024}'); a(f's_mul_i32 s{sA}, s{sW}, {14*1024}'); a(f's_add_u32 s{sBase}, s{sBase}, s{sA}')
    stream(S_ACT, 14, 56*1024, 'v', 144, True)
    a(f's_lshl_b32 s{sA}, s{sSeg}, 7'); a(f's_add_u32 s{sA}, s{sA}, {F_O}'); a(f's_mov_b32 s{sB}, 32')
    a._emit('s_waitcnt vmcnt(0)'); a.vm = []
    spin_flag(a, f'{L}_wo', S_FLG, sA, sB, sBudget, 14)
    a(f's_lshl_b32 s{sBase}, s{sSeg}, 18'); a(f's_lshl_b32 s{sA}, s{sW}, 15'); a(f's_add_u32 s{sBase}, s{sBase}, s{sA}')
    stream(S_O, 32, 128*1024, 'a', 0, False)
    for q in range(4): a(f'ds_write_b128 v10, v[{AC+4*q}:{AC+4*q+3}] offset:{1024*q}')
    a.wait(lg=0); a('s_barrier')
    for w in range(4): a(f'ds_read_b128 v[{RING+4*w}:{RING+4*w+3}], v11 offset:{4096*w}')
    for r in range(4):
        a(f'v_add_f32 v{RING+r}, v{RING+r}, v{RING+4+r}'); a(f'v_add_f32 v{RING+8+r}, v{RING+8+r}, v{RING+12+r}')
    a('v_lshlrev_b32 v40, 16, v12'); a('v_and_b32 v41, 0xffff0000, v12'); a('v_lshlrev_b32 v42, 16, v13'); a('v_and_b32 v43, 0xffff0000, v13')
    for r in range(4):
        a(f'v_add_f32 v{RING+r}, v{RING+r}, v{RING+8+r}'); a(f'v_add_f32 v{RING+r}, v{RING+r}, v{40+r}')
    a(f'v_cvt_pk_bf16_f32 v12, v{RING}, v{RING+1}'); a(f'v_cvt_pk_bf16_f32 v13, v{RING+2}, v{RING+3}')
    a(f'buffer_store_dwordx2 v[12:13], v9, s[{S_OUT}:{S_OUT+3}], s{sT0} offen')
    a.wait(lg=0); a('s_barrier')
    a(f's_add_u32 s{sSeg}, s{sSeg}, 10'); a(f's_cmp_lt_u32 s{sSeg}, 64'); a(f's_cbranch_scc1 {L}_loop')
```

```python
import sys
from asmlib import *
from layout import *
from common import *
import chain, workers as W

NAME = 'parallel_sum__memory_aug_recurrent_mem_tr__dense_activation_mish__prompt_kernel'
def build(opt=None, stamps=False, force_slow=False):
    opt = dict(opt or {})
    a = Asm()
    a('s_cmp_ge_u32 s2, 256'); a('s_cbranch_scc1 L_end')
    if stamps: a('s_memrealtime s[100:101]')
    census(a, 'L', 90, 91, 92, 93)
    if force_slow: a('s_mov_b32 s91, 0')
    a('s_cmp_ge_u32 s90, 32'); a('s_cbranch_scc1 L_worker')
    chain.chain_role(a, 'C', 90, 91, wait_kv=True, stamps=None, opt=opt)
    if stamps:
        a('s_memrealtime s[80:81]'); a('s_branch L_stamp')
    else:
        a('s_branch L_end')
    a('L_worker:')
    a.assume_drained()
    W.w_prologue(a, 90)
    W.phase_ln(a, 'LN')
    W.phase_kv(a, 'KV')
    W.phase_f1(a, 'F1')
    a(f's_cmp_ge_u32 s{W.sWid}, 64'); a('s_cbranch_scc1 L_final')
    W.phase_attn(a, 'AT')
    if stamps:
        a('s_memrealtime s[80:81]'); a('s_branch L_stamp')
    else:
        a('s_branch L_end')
    a('L_final:')
    a.assume_drained()
    W.phase_final(a, 'FN')
    if stamps:
        a('s_memrealtime s[80:81]')
        a('L_stamp:')
        a(f's_load_dwordx2 s[60:61], s[0:1], {KA_WS}')
        a.wait(lg=0)
        a(f's_add_u32 s60, s60, {OFF_STAMP}'); a('s_addc_u32 s61, s61, 0'); a('s_mov_b32 s62, 65536'); a('s_mov_b32 s63, 0x20000')
        a('v_mov_b32 v20, s100'); a('v_mov_b32 v21, s80'); a('v_mov_b32 v22, s90'); a('v_mov_b32 v23, s92')
        a('s_lshl_b32 s34, s2, 4'); a('v_mov_b32 v1, s34')
        a('s_mov_b64 exec, 1')
        a('buffer_store_dwordx4 v[20:23], v1, s[60:63], 0 offen')
    a.wait(vm=0)
    a('L_end:')
    a('s_endpgm')
    return a

HEADER = open('parallel_sum__memory_aug_recurrent_mem_tr__dense_activation_mish__prompt.s.ref').read().split('; Override launch geometry')[0]
def write(path, **kw):
    a = build(**kw)
    txt = HEADER
    txt += '; @launch grid=(256,1,1) block=(256,1,1) lds=163840\n'
    txt += '''; Persistent single launch, one workgroup per CU (generated by gen/gen_main.py, hand-designed schedule).
'''
    txt += '.amdgcn_target "amdgcn-amd-amdhsa--gfx950"\n.text\n.globl %s\n.p2align 8\n.type %s,@function\n%s:\n' % (NAME, NAME, NAME)
    txt += a.text()
    txt += '.section .rodata,"a"\n.p2align 6\n' + kd(NAME, 512, 102, 256)
    open(path, 'w').write(txt)
    print(path, 'nops', a.nops_inserted, 'waits', a.waits_inserted, 'lines', len(a.items), 'bytes', len(txt))

if __name__ == '__main__':
    opt = dict(ack=1)
    kw = {}
    for x in sys.argv[2:]:
        if x == 'slow': kw['force_slow'] = True
        elif x == 'stamps': kw['stamps'] = True
        else: k, v = x.split('='); opt[k] = int(v)
    write(sys.argv[1], opt=opt, **kw)
```
